```python
import torch

def _softmax(x, axis=-1):
    return torch.softmax(x, dim=axis)
def _gelu(x):
    return torch.nn.functional.gelu(x, approximate="tanh")
def _silu(x):
    return torch.nn.functional.silu(x)
def _sigmoid(x):
    return torch.sigmoid(x)
def _layernorm(x, axis=-1, eps=1e-5):
    m = x.mean(dim=axis, keepdim=True)
    v = x.var(dim=axis, keepdim=True, unbiased=False)
    return (x - m) / torch.sqrt(v + eps)
def _scatter_add(tgt, idx, src, axis=0):
    return tgt.clone().index_add_(axis, idx, src)
def _segment_sum(src, seg, n):
    out = torch.zeros((n,) + src.shape[1:], dtype=src.dtype)
    return out.index_add_(0, seg, src)
def _pad(x, pw):
    flat = tuple(v for pair in reversed(pw) for v in pair)
    return torch.nn.functional.pad(x, flat)

kernel_name = 'recurrent_scan__ssm_conv_s4__dense_activation_mish__prompt'

def setup_inputs():

    _w = (lambda a: (lambda t: t.to(torch.bfloat16) if t.is_floating_point() else t)(torch.as_tensor(a)))
    def _A_setup():
        B, L, D, N = 1, 2048, 640, 128
        A_re = -(lambda _x: torch.exp(torch.as_tensor(_x)))((lambda *s: torch.randn(*s, dtype=torch.bfloat16) * 3.2)(D, N))
        A_im = torch.pi * (lambda *s: torch.randn(*s, dtype=torch.bfloat16) * 0.2)(D, N)
        B_re = (lambda *s: torch.randn(*s, dtype=torch.bfloat16) * 0.2)(D, N)
        B_im = (lambda *s: torch.randn(*s, dtype=torch.bfloat16) * 0.2)(D, N)
        C_re = (lambda *s: torch.randn(*s, dtype=torch.bfloat16) * 0.2)(D, N)
        C_im = (lambda *s: torch.randn(*s, dtype=torch.bfloat16) * 0.2)(D, N)
        log_dt = (lambda *s: torch.randn(*s, dtype=torch.bfloat16) * 0.2)(D) * 0.5 - 4.0
        Dskip = (lambda *s: torch.randn(*s, dtype=torch.bfloat16) * 0.2)(D)
        return {
            "u": _w((lambda *s: torch.randn(*s, dtype=torch.bfloat16) * 0.05)(B, L, D)),
            "A_re": _w(A_re),
            "A_im": _w(A_im),
            "B_re": _w(B_re),
            "B_im": _w(B_im),
            "C_re": _w(C_re),
            "C_im": _w(C_im),
            "log_dt": _w(log_dt),
            "Dskip": _w(Dskip),
        }
    _A_in = _A_setup()

    def _B_setup():
        B, S, D, F = 1, 2048, 640, 1728
        return {
            "x": _w((lambda *s: torch.randn(*s, dtype=torch.bfloat16) * 0.05)(B, S, D)),
            "w1": _w((lambda *s: torch.randn(*s, dtype=torch.bfloat16) * 0.8)(D, F) * (D ** -0.5)),
            "b1": _w((lambda *s: torch.randn(*s, dtype=torch.bfloat16) * 0.4)(F)),
            "w2": _w((lambda *s: torch.randn(*s, dtype=torch.bfloat16) * 0.1)(F, D) * (F ** -0.5)),
        }
    _B_in = _B_setup()

    return {
        "A_u": _A_in["u"],
        "A_A_re": _A_in["A_re"],
        "A_A_im": _A_in["A_im"],
        "A_B_re": _A_in["B_re"],
        "A_B_im": _A_in["B_im"],
        "A_C_re": _A_in["C_re"],
        "A_C_im": _A_in["C_im"],
        "A_log_dt": _A_in["log_dt"],
        "A_Dskip": _A_in["Dskip"],
        "B_x": _B_in["x"],
        "B_w1": _B_in["w1"],
        "B_b1": _B_in["b1"],
        "B_w2": _B_in["w2"],
    }

def reference(A_u, A_A_re, A_A_im, A_B_re, A_B_im, A_C_re, A_C_im, A_log_dt, A_Dskip, B_x, B_w1, B_b1, B_w2):
    def _A_ref(u, A_re, A_im, B_re, B_im, C_re, C_im, log_dt, Dskip):
        Bsz, L, D = u.shape
        dt = torch.exp(log_dt)[:, None]
        A = A_re + 1j * A_im
        Bc = B_re + 1j * B_im
        Cc = C_re + 1j * C_im
        logdA = dt * A
        dB = dt * Bc
        l = (lambda x, dt: x.to(dt))(torch.arange(L), A_re.dtype)
        P = torch.exp(logdA[:, :, None] * l[None, None, :])
        K = torch.einsum("dn,dnl,dn->dl", Cc, P, dB).real
        L2 = 2 * L
        Kp = _pad(K, ((0, 0), (0, L)))
        up = (lambda x, *d: x.permute(*d))(u, 0, 2, 1)
        up = _pad(up, ((0, 0), (0, 0), (0, L)))
        Kf = (lambda x, axes=(-2,-1): torch.fft.rfft2(x.float(), dim=axes))(Kp[:, None, :], axes=(-2, -1))
        Uf = (lambda x, axes=(-2,-1): torch.fft.rfft2(x.float(), dim=axes))(up[:, :, None, :], axes=(-2, -1))
        Yf = Uf * Kf[None, :, :, :]
        y = (lambda x, s, axes=(-2,-1): torch.fft.irfft2(x, s=s, dim=axes).to(torch.bfloat16))(Yf, (1, L2), axes=(-2, -1))[:, :, 0, :L]
        y = (lambda x, *d: x.permute(*d))(y, 0, 2, 1) + u * Dskip[None, None, :]
        return y

    def _B_ref(x, w1, b1, w2):
        h = torch.einsum("bsd,df->bsf", x, w1) + b1
        sp = torch.log1p(torch.exp(-torch.abs(h))) + torch.where(h > 0, h, torch.zeros_like(h))
        act = h * torch.tanh(sp)
        return torch.einsum("bsf,fd->bsd", act, w2)

    x = A_u
    xn = _layernorm(x, axis=-1)
    s = _A_ref(xn, A_A_re, A_A_im, A_B_re, A_B_im, A_C_re, A_C_im, A_log_dt, A_Dskip)
    g = _silu(_B_ref(xn, B_w1, B_b1, B_w2))
    return x + s * g
```

```python
import re

TRANS = ("v_exp_f32", "v_log_f32", "v_rcp_f32", "v_rsq_f32", "v_sqrt_f32", "v_sin_f32", "v_cos_f32",
         "v_rcp_iflag_f32")

def _regs(op):
    op = op.strip()
    op = re.sub(r'^-', '', op)
    m = re.match(r'^(?:abs|neg)\((.*)\)$', op)
    if m: op = m.group(1)
    op = op.strip('|')
    m = re.match(r'^([vsa])(\d+)$', op)
    if m: return [(m.group(1), int(m.group(2)))]
    m = re.match(r'^([vsa])\[(\d+):(\d+)\]$', op)
    if m: return [(m.group(1), i) for i in range(int(m.group(2)), int(m.group(3)) + 1)]
    if op in ('vcc', 'exec', 'm0', 'vcc_lo', 'vcc_hi', 'exec_lo', 'exec_hi', 'scc'):
        return [('x', op.split('_')[0])]
    return []

class Ins:
    __slots__ = ("mn", "dst", "src", "kind", "passes", "text", "srcC", "srcAB", "dpp", "storedata")

def mfma_passes(mn):
    if "32x32x16" in mn or "32x32x8" in mn: return 8
    if "16x16x32" in mn or "16x16x16" in mn: return 4
    if "32x32x2_f32" in mn: return 16
    if "16x16x4_f32" in mn: return 8
    raise Exception(mn)

def parse(text):
    t = text.split(';')[0].strip()
    if not t or t.endswith(':') or t.startswith('.'): return None
    parts = t.split(None, 1)
    mn = parts[0]
    rest = parts[1] if len(parts) > 1 else ""
    extra = " ".join(re.findall(r'\b[a-z_]+:\[[^\]]*\]', rest))
    rest = re.sub(r'\b[a-z_]+:\[[^\]]*\]', '', rest).strip()
    ops = [o.strip() for o in rest.split(',')] if rest else []
    mods = ""
    if ops:
        last = ops[-1].split(None, 1)
        ops[-1] = last[0]
        mods = last[1] if len(last) > 1 else ""
    mods = mods + " " + extra
    i = Ins(); i.mn = mn; i.text = text; i.dst = []; i.src = []; i.passes = 0; i.srcC = []; i.srcAB = []
    i.dpp = ("_dpp" in mn) or ("row_" in mods) or ("wave_" in mods) or ("quad_perm" in mods)
    i.storedata = []
    base = re.sub(r'_(e32|e64|dpp|sdwa)$', '', mn)
    if base.startswith("v_mfma"):
        i.kind = "mfma"; i.passes = mfma_passes(base)
        i.dst = _regs(ops[0]); i.srcAB = _regs(ops[1]) + _regs(ops[2]); i.srcC = _regs(ops[3])
        i.src = i.srcAB + i.srcC
    elif base.startswith("v_"):
        i.kind = "trans" if base in TRANS else "valu"
        nd = 1
        if base.startswith(("v_add_co", "v_sub_co", "v_addc_co", "v_subb_co", "v_subrev_co", "v_div_scale", "v_mad_u64")): nd = 2
        if base.startswith("v_permlane") and "swap" in base:
            i.dst = _regs(ops[0]) + _regs(ops[1]); i.src = list(i.dst); i.kind = "permlane"
        else:
            for o in ops[:nd]: i.dst += _regs(o)
            for o in ops[nd:]: i.src += _regs(o)
            if base.startswith(("v_fmac", "v_dot2c", "v_pk_fmac", "v_writelane")) or i.dpp: i.src += _regs(ops[0])
            if base.startswith("v_cmpx"): i.dst += [('x', 'exec')]
            if base.startswith("v_div_fmas"): i.src += [('x', 'vcc')]
        if base.startswith(("v_readlane", "v_readfirstlane")): i.kind = "readlane"
    elif base.startswith("s_"):
        i.kind = "salu"
        if base in ("s_nop", "s_waitcnt", "s_barrier", "s_endpgm", "s_setprio", "s_sleep", "s_branch") or base.startswith("s_cbranch"):
            pass
        elif base.startswith("s_cmp"):
            for o in ops: i.src += _regs(o)
        else:
            i.dst = _regs(ops[0])
            for o in ops[1:]: i.src += _regs(o)
            if "saveexec" in base: i.dst += [('x', 'exec')]
    elif base.startswith(("buffer_", "global_", "ds_", "flat_")):
        i.kind = "mem"
        isload = ("load" in base or "read" in base or "bpermute" in base or "swizzle" in base or "permute" in base)
        lds = (" lds" in (" " + mods)) or "load_lds" in base
        if base in ("buffer_wbl2", "buffer_inv"):
            pass
        elif isload and not lds:
            i.dst = _regs(ops[0])
            for o in ops[1:]: i.src += _regs(o)
        else:
            for o in ops: i.src += _regs(o)
            if lds: i.src += [('x', 'm0')]; i.kind = "ldsdma"
            if "store" in base and ("x4" in base or "x3" in base):
                dop = ops[0] if base.startswith("buffer_") else ops[1]
                i.storedata = _regs(dop)
            if "atomic" in base and "sc0" in mods:
                i.dst = _regs(ops[0])
    else:
        raise Exception("unknown instr " + text)
    return i

class Asm:
    def __init__(self):
        self.lines = []
        self.hist = []
        self.nops = 0
        self.uid = 0
    def raw(self, s):
        self.lines.append(s)
    def label(self, name):
        self.lines.append(name + ":")
    def newlabel(self, p="L"):
        self.uid += 1
        return f"{p}_{self.uid}"
    def flush_hazards(self, n=20):
        need = 0
        dist = 0
        for p in reversed(self.hist):
            if p.kind == "mfma":
                need = max(need, {4: 8, 8: 12, 16: 20}[p.passes] - dist)
            elif p.kind in ("valu", "trans", "readlane", "permlane"):
                need = max(need, 5 - dist)
            dist += self._ws(p)
            if dist > 24: break
        if need > 0: self._nop(need)
    def _ws(self, p):
        if p.mn == "s_nop":
            return int(p.text.split()[1]) + 1
        return 1
    def _nop(self, n):
        while n > 0:
            k = min(n, 16)
            t = f"s_nop {k-1}"
            self.lines.append("  " + t)
            self.hist.append(parse(t)); self.nops += 1
            n -= k
    def __call__(self, text):
        for ln in text.split("\n"):
            ln = ln.strip()
            if not ln: continue
            if ln.startswith(";"):
                self.lines.append("  " + ln); continue
            i = parse(ln)
            if i is None:
                self.lines.append(ln); continue
            need = self._need(i)
            if need > 0: self._nop(need)
            self.lines.append("  " + ln)
            self.hist.append(i)
            if len(self.hist) > 40: self.hist = self.hist[-40:]
    def _need(self, c):
        need = 0; dist = 0
        VAL = ("valu", "trans", "readlane", "permlane")
        csrc = set(c.src); cdst = set(c.dst)
        for p in reversed(self.hist):
            pd = set(p.dst)
            req = 0
            if p.kind in VAL:
                vd = {r for r in pd if r[0] in 'va'}
                sd = {r for r in pd if r[0] in 'sx'}
                if vd & csrc:
                    if c.kind == "readlane": req = max(req, 1)
                    if c.kind == "permlane": req = max(req, 2)
                    if c.dpp: req = max(req, 2)
                    if c.kind == "mfma": req = max(req, 2)
                    if p.kind == "trans" and c.kind in ("valu", "readlane", "permlane", "mfma"): req = max(req, 1)
                if sd & csrc:
                    if c.kind in ("mem", "ldsdma"): req = max(req, 5)
                    if c.kind in VAL or c.kind == "mfma": req = max(req, 2)
                    if c.kind == "readlane" : req = max(req, 4)
                    if c.mn.startswith("v_div_fmas"): req = max(req, 4)
                    if c.kind == "salu": req = max(req, 1)
                if p.mn.startswith("v_dot") and vd & (csrc | cdst):
                    if not (c.mn == p.mn and c.src[-1:] == p.dst[-1:] and not (vd & set(c.src[:-1]))):
                        req = max(req, 3)
                if ('x', 'exec') in pd:
                    if c.dpp: req = max(req, 5)
                    if c.kind in ("readlane", "permlane", "mfma"): req = max(req, 4)
            if p.kind == "salu":
                if ('x', 'm0') in pd and c.kind == "ldsdma": req = max(req, 1)
            if p.kind == "mfma":
                n = p.passes
                if c.kind == "mfma":
                    if pd & set(c.srcAB): req = max(req, {4: 8, 8: 12, 16: 20}[n])
                    if pd & set(c.srcC):
                        if not (set(c.srcC) == pd and c.passes == n): req = max(req, {4: 6, 8: 10, 16: 18}[n])
                elif c.kind in VAL or c.kind in ("mem", "ldsdma"):
                    if pd & (csrc | cdst): req = max(req, {4: 8, 8: 12, 16: 20}[n])
                if c.kind in VAL and set(p.srcC) & cdst:
                    req = max(req, {4: 3, 8: 7, 16: 15}[n])
            if p.storedata and (set(p.storedata) & cdst):
                req = max(req, 2)
            if req - dist > need: need = req - dist
            dist += self._ws(p)
            if dist > 24: break
        return need
    def text(self):
        return "\n".join(self.lines) + "\n"

def kdesc(name, vgpr, sgpr=102, accum=None):
    if accum is None: accum = (min(vgpr, 256) + 3) // 4 * 4
    return f""".p2align 6
.amdhsa_kernel {name}
  .amdhsa_next_free_vgpr {vgpr}
  .amdhsa_next_free_sgpr {sgpr}
  .amdhsa_accum_offset {accum}
  .amdhsa_group_segment_fixed_size 0
  .amdhsa_kernarg_size 128
  .amdhsa_user_sgpr_count 2
  .amdhsa_user_sgpr_kernarg_segment_ptr 1
  .amdhsa_system_sgpr_workgroup_id_x 1
.end_amdhsa_kernel
"""
```

```python
import sys
from common import *
from role_aux import *
from role_kgen import *
from role_gemm1 import *
from role_conv import *
from role_gemm2 import *

def build(kernels, path):
    out = []
    for n, roles, lds, vg in kernels:
        g = sum(c for c, f in roles)
        out.append(f"; @launch kernel={n} grid=({g},1,1) block=(256,1,1) lds={lds}")
    out.append('.amdgcn_target "amdgcn-amd-amdhsa--gfx950"\n.text')
    uid = 0
    for n, roles, lds, vg in kernels:
        a = Asm(); a.uid = uid
        a.raw(f".globl {n}\n.p2align 8\n.type {n},@function\n{n}:")
        prologue(a)
        start = 0
        labs = []
        for i, (c, f) in enumerate(roles):
            labs.append(f"{n}_r{i}")
            a(f"s_cmp_lt_u32 s2, {start + c}")
            a(f"s_cbranch_scc1 {labs[-1]}")
            start += c
        a("s_endpgm")
        start = 0
        for i, (c, f) in enumerate(roles):
            a.label(labs[i])
            a.hist = []
            a(f"s_sub_u32 s3, s2, {start}")
            a("s_waitcnt lgkmcnt(0)")
            f(a, 3)
            start += c
        out.append(a.text())
        uid = a.uid
    out.append('.section .rodata,"a"')
    for n, roles, lds, vg in kernels:
        out.append(kdesc(n, vg))
    open(path, "w").write("\n".join(out))

if __name__ == "__main__":
    build([
        ("aux_kernel", [(64, role_lnt), (27, role_colsum), (54, role_w2t), (160, role_kgen)], 65536, 256),
        ("g1_kernel", [(224, role_gemm1)], G1_LDS, 256),
        ("conv_kernel", [(160, role_conv)], 4 * CV_LDS, 256),
        ("g2_kernel", [(256, role_gemm2)], G2_LDS, 256),
    ], "t3.s")
```

```python
from asmlib import *

WS_XNP = 0x0
SZ_XNP = 2621440
WS_K = 0x280000
SZ_K = 2621440
WS_W2T = 0x500000
SZ_W2T = 2211840
WS_H = 0x800000
SZ_H = 7077888
WS_ST = 0x1000000
SZ_ST = 2621440

WS_RST = 0x1400000
SZ_RST = 16384
WS_CS = 0x1410000
SZ_CS = 7168

P_U, P_ARE, P_AIM, P_BRE, P_BIM, P_CRE, P_CIM, P_LDT, P_DSK, P_BX, P_W1, P_B1, P_W2, P_OUT, P_DBG, P_WS = range(16)
def ptr(i): return 16 + 2 * i

def prologue(a):
    a("s_load_dwordx16 s[16:31], s[0:1], 0")
    a("s_load_dwordx16 s[32:47], s[0:1], 64")

def srd(a, sd, p, nbytes, off=0):
    b = ptr(p)
    if off:
        a(f"s_add_u32 s{sd}, s{b}, {off}")
        a(f"s_addc_u32 s{sd+1}, s{b+1}, 0")
    else:
        a(f"s_mov_b32 s{sd}, s{b}")
        a(f"s_mov_b32 s{sd+1}, s{b+1}")
    a(f"s_mov_b32 s{sd+2}, {nbytes}")
    a(f"s_mov_b32 s{sd+3}, 0x20000")

LOG2E = 0x3fb8aa3b
LOG2E_LO = 0x32a5705f
LN2 = 0x3f317218
INV2PI = 0x3e22f983

WS_STAMP = 0x2000000
import os
STAMPS = os.environ.get("STAMPS", "0") == "1"
def stamp(a, idx):
    if not STAMPS: return
    a(f"s_memtime s[92:93]")
    a(f"s_waitcnt lgkmcnt(0)")
    a(f"s_mov_b32 s{80+idx}, s92")
def stamp_flush(a, n, wg_s=2, base=0):
    if not STAMPS: return
    a(f"s_add_u32 s96, s{ptr(P_WS)}, {WS_STAMP + base}")
    a(f"s_addc_u32 s97, s{ptr(P_WS)+1}, 0")
    a(f"s_mov_b32 s98, 0x100000")
    a(f"s_mov_b32 s99, 0x20000")
    a(f"v_lshrrev_b32 v250, 6, v0")
    a(f"s_lshl_b32 s94, s{wg_s}, 2")
    a(f"v_add_u32 v250, s94, v250")
    a(f"v_lshlrev_b32 v250, 6, v250")
    for i in range(n):
        a(f"v_mov_b32 v251, s{80+i}")
        a(f"buffer_store_dword v251, v250, s[96:99], 0 offen offset:{4*i}")
```

```python
from common import *

TSTR = 1296

def load_tile32(a, srd_in, rowbase_s):
    a("v_and_b32 v2, 63, v0")
    a("v_lshrrev_b32 v3, 6, v0")
    a("v_lshrrev_b32 v4, 3, v0")
    a("v_and_b32 v5, 7, v0")
    a("v_lshlrev_b32 v5, 4, v5")
    a(f"v_add_u32 v6, s{rowbase_s}, v4")
    a("v_mul_u32_u24 v6, 1280, v6")
    a("v_add_u32 v6, v6, v5")
    for j in range(10):
        a(f"buffer_load_dwordx4 v[{16+4*j}:{19+4*j}], v6, s[{srd_in}:{srd_in+3}], 0 offen offset:{128*j}")
    a(f"v_mul_u32_u24 v1, {TSTR}, v4")
    a("v_add_u32 v1, v1, v5")

def role_lnt(a, wg_s, sc1=False, flag=None):
    srd(a, 56, P_WS, SZ_RST, WS_RST)
    srd(a, 48, P_U, 2621440)
    srd(a, 52, P_WS, SZ_XNP, WS_XNP)
    a(f"s_lshl_b32 s4, s{wg_s}, 5")
    load_tile32(a, 48, 4)
    a("s_mov_b32 s5, 0x3f803f80")
    a("v_mov_b32 v7, 0")
    a("v_mov_b32 v8, 0")
    for j in range(10):
        a(f"s_waitcnt vmcnt({9-j})")
        for k in range(4):
            acc = 7 + (k & 1)
            a(f"v_dot2_f32_bf16 v{acc}, v{16+4*j+k}, s5, v{acc}")
    a("v_add_f32 v7, v7, v8")
    def red8(r):
        a(f"v_add_f32_dpp v{r}, v{r}, v{r} quad_perm:[1,0,3,2] row_mask:0xf bank_mask:0xf")
        a(f"v_add_f32_dpp v{r}, v{r}, v{r} quad_perm:[2,3,0,1] row_mask:0xf bank_mask:0xf")
        a(f"v_add_f32_dpp v{r}, v{r}, v{r} row_half_mirror row_mask:0xf bank_mask:0xf")
    red8(7)
    a("s_mov_b32 s6, 0x3acccccd")
    a("v_mul_f32 v7, s6, v7")
    a("v_mov_b32 v8, 0")
    a("v_mov_b32 v9, 0")
    for i in range(40):
        a(f"v_lshlrev_b32 v{64+2*i}, 16, v{16+i}")
        a(f"v_and_b32 v{65+2*i}, 0xffff0000, v{16+i}")
        a(f"v_sub_f32 v10, v{64+2*i}, v7")
        a(f"v_sub_f32 v11, v{65+2*i}, v7")
        a(f"v_fmac_f32 v8, v10, v10")
        a(f"v_fmac_f32 v9, v11, v11")
    a("v_add_f32 v8, v8, v9")
    red8(8)
    a("v_mul_f32 v8, s6, v8")
    a("v_cvt_pk_bf16_f32 v9, v7, v8")
    a("v_lshlrev_b32 v7, 16, v9")
    a("v_and_b32 v8, 0xffff0000, v9")
    a("v_add_f32 v8, 0x3727c5ac, v8")
    a("v_cvt_pk_bf16_f32 v8, v8, v8")
    a("v_lshlrev_b32 v8, 16, v8")
    a("v_sqrt_f32 v8, v8")
    a("v_cvt_pk_bf16_f32 v8, v8, v8")
    a("v_lshlrev_b32 v8, 16, v8")
    a("v_rcp_f32 v9, v8")
    a("v_sub_f32 v10, 0, v7")
    a("v_cvt_pk_bf16_f32 v10, v10, v10")
    a("v_lshrrev_b32 v11, 16, v8")
    a("v_add_u32 v12, s4, v4")
    a("v_lshlrev_b32 v12, 3, v12")
    a("v_cmp_eq_u32 vcc, 0, v5")
    a("s_and_saveexec_b64 s[8:9], vcc")
    a("buffer_store_dwordx2 v[10:11], v12, s[56:59], 0 offen" + (" sc1" if sc1 else ""))
    a("s_mov_b64 exec, s[8:9]")
    if flag: flag(a)
    for i in range(40):
        a(f"v_sub_f32 v10, v{64+2*i}, v7")
        a(f"v_sub_f32 v11, v{65+2*i}, v7")
        a(f"v_cvt_pk_bf16_f32 v10, v10, v11")
        a(f"v_and_b32 v11, 0xffff0000, v10")
        a(f"v_lshlrev_b32 v10, 16, v10")
        a(f"v_mul_f32 v12, v10, v9")
        a(f"v_mul_f32 v13, v11, v9")
        a(f"v_fma_f32 v10, -v12, v8, v10")
        a(f"v_fma_f32 v11, -v13, v8, v11")
        a(f"v_fmac_f32 v12, v10, v9")
        a(f"v_fmac_f32 v13, v11, v9")
        a(f"v_cvt_pk_bf16_f32 v{16+i}, v12, v13")
        if i % 4 == 3:
            j = i // 4
            a(f"ds_write_b128 v1, v[{16+4*j}:{19+4*j}] offset:{128*j}")
    a("s_waitcnt lgkmcnt(0)")
    a("s_barrier")
    a("v_lshrrev_b32 v4, 4, v2")
    a("v_bfe_u32 v5, v2, 2, 2")
    a("v_lshlrev_b32 v5, 2, v5")
    a("v_add_u32 v5, v5, v4")
    a(f"v_mul_u32_u24 v5, {TSTR}, v5")
    a("v_and_b32 v6, 3, v2")
    a("v_lshlrev_b32 v6, 3, v6")
    a("v_add_u32 v5, v5, v6")
    a("v_lshlrev_b32 v6, 5, v3")
    a("v_add_u32 v5, v5, v6")
    a("v_and_b32 v6, 15, v2")
    a("v_lshlrev_b32 v7, 4, v3")
    a("v_add_u32 v6, v6, v7")
    a("v_lshlrev_b32 v6, 6, v6")
    a("v_lshlrev_b32 v7, 4, v4")
    a("v_add_u32 v6, v6, v7")
    a(f"s_mul_i32 s4, s{wg_s}, 40960")
    for k in range(10):
        a(f"ds_read_b64_tr_b16 v[{16+4*k}:{17+4*k}], v5 offset:{128*k}")
        a(f"ds_read_b64_tr_b16 v[{18+4*k}:{19+4*k}], v5 offset:{128*k+16*TSTR}")
    for k in range(10):
        a(f"s_waitcnt lgkmcnt({min(15, 2*(9-k))})")
        a(f"buffer_store_dwordx4 v[{16+4*k}:{19+4*k}], v6, s[52:55], s4 offen")
        if k < 9: a("s_add_u32 s4, s4, 4096")
    a("s_endpgm")

def role_w2t(a, wg_s):
    srd(a, 48, P_W2, 2211840)
    srd(a, 52, P_WS, SZ_W2T, WS_W2T)
    a(f"s_lshl_b32 s4, s{wg_s}, 5")
    load_tile32(a, 48, 4)
    for j in range(10):
        a(f"s_waitcnt vmcnt({9-j})")
        a(f"ds_write_b128 v1, v[{16+4*j}:{19+4*j}] offset:{128*j}")
    a("s_waitcnt lgkmcnt(0)")
    a("s_barrier")
    a("v_lshrrev_b32 v4, 4, v2")
    a("v_bfe_u32 v5, v2, 2, 2")
    a("v_lshlrev_b32 v4, 3, v4")
    a("v_add_u32 v5, v5, v4")
    a(f"v_mul_u32_u24 v5, {TSTR}, v5")
    a("v_and_b32 v6, 3, v2")
    a("v_lshlrev_b32 v6, 3, v6")
    a("v_add_u32 v5, v5, v6")
    a("v_lshlrev_b32 v6, 5, v3")
    a("v_add_u32 v5, v5, v6")
    a("v_mul_u32_u24 v6, 55296, v3")
    a("v_lshlrev_b32 v7, 4, v2")
    a("v_add_u32 v6, v6, v7")
    a(f"s_lshl_b32 s4, s{wg_s}, 10")
    for k in range(10):
        a(f"ds_read_b64_tr_b16 v[{16+4*k}:{17+4*k}], v5 offset:{128*k}")
        a(f"ds_read_b64_tr_b16 v[{18+4*k}:{19+4*k}], v5 offset:{128*k+4*TSTR}")
    for k in range(10):
        a(f"s_waitcnt lgkmcnt({min(15, 2*(9-k))})")
        a(f"buffer_store_dwordx4 v[{16+4*k}:{19+4*k}], v6, s[52:55], s4 offen")
        if k < 9: a(f"s_add_u32 s4, s4, {4*54*1024}")
    a("s_endpgm")

def role_colsum(a, wg_s, sc1=False, flag=None):
    srd(a, 48, P_W1, 2211840)
    srd(a, 52, P_WS, SZ_CS, WS_CS)
    a("v_lshrrev_b32 v4, 3, v0")
    a("v_and_b32 v5, 7, v0")
    a("v_mul_u32_u24 v6, 3456, v4")
    a("v_lshl_add_u32 v6, v5, 4, v6")
    a(f"s_lshl_b32 s4, s{wg_s}, 7")
    for j in range(20):
        a(f"buffer_load_dwordx4 v[{16+4*j}:{19+4*j}], v6, s[48:51], s4 offen")
        if j < 19: a("s_add_u32 s4, s4, 110592")
    for r in range(8, 16): a(f"v_mov_b32 v{r}, 0")
    for j in range(20):
        a(f"s_waitcnt vmcnt({19-j})")
        for k in range(4):
            a(f"v_lshlrev_b32 v100, 16, v{16+4*j+k}")
            a(f"v_and_b32 v101, 0xffff0000, v{16+4*j+k}")
            a(f"v_pk_add_f32 v[{8+2*k}:{9+2*k}], v[{8+2*k}:{9+2*k}], v[100:101]")
    a("v_mul_u32_u24 v6, 272, v4")
    a("v_lshl_add_u32 v6, v5, 5, v6")
    a("ds_write_b128 v6, v[8:11]")
    a("ds_write_b128 v6, v[12:15] offset:16")
    a("s_waitcnt lgkmcnt(0)")
    a("s_barrier")
    a("v_and_b32 v2, 63, v0")
    a("v_lshrrev_b32 v3, 6, v0")
    a("v_mul_u32_u24 v6, 2176, v3")
    a("v_lshl_add_u32 v6, v2, 2, v6")
    for k in range(8): a(f"ds_read_b32 v{16+k}, v6 offset:{272*k}")
    a("s_waitcnt lgkmcnt(0)")
    for k in range(1, 8): a(f"v_add_f32 v16, v16, v{16+k}")
    a("s_barrier")
    a("v_lshlrev_b32 v6, 2, v0")
    a("ds_write_b32 v6, v16")
    a("s_waitcnt lgkmcnt(0)")
    a("s_barrier")
    a("v_lshlrev_b32 v6, 2, v2")
    for k in range(4): a(f"ds_read_b32 v{16+k}, v6 offset:{256*k}")
    a("s_waitcnt lgkmcnt(0)")
    a("v_add_f32 v16, v16, v17")
    a("v_add_f32 v18, v18, v19")
    a("v_add_f32 v16, v16, v18")
    a("v_cvt_pk_bf16_f32 v17, v16, v16")
    a("v_lshlrev_b32 v17, 16, v17")
    a("v_sub_f32 v17, v16, v17")
    a("v_cvt_pk_bf16_f32 v16, v16, v17")
    a(f"s_lshl_b32 s4, s{wg_s}, 8")
    a("v_cmp_gt_u32 vcc, 64, v0")
    a("s_and_saveexec_b64 s[8:9], vcc")
    a("buffer_store_dword v16, v6, s[52:55], s4 offen" + (" sc1" if sc1 else ""))
    a("s_mov_b64 exec, s[8:9]")
    if flag: flag(a)
    a("s_endpgm")
```

```python
from common import *

CV_KL = 0
CV_ST = 4224
CV_LDS = 8448

def role_conv(a, wg_s, sc1=False, flag=None):
    srd(a, 48, P_WS, SZ_XNP, WS_XNP)
    srd(a, 52, P_WS, SZ_K, WS_K)
    srd(a, 56, P_WS, SZ_ST, WS_ST)
    srd(a, 60, P_DSK, 1280)
    a("v_and_b32 v2, 63, v0")
    a("v_lshrrev_b32 v3, 6, v0")
    a("v_readfirstlane_b32 s4, v3")
    a(f"s_lshl_b32 s5, s{wg_s}, 2")
    a("s_add_u32 s5, s5, s4")
    a(f"s_mul_i32 s6, s4, {CV_LDS}")
    a("s_lshl_b32 s7, s5, 12")
    a("s_lshl_b32 s8, s5, 6")
    a("s_lshl_b32 s9, s5, 1")
    a("v_lshlrev_b32 v4, 4, v2")
    KT = 16
    for q in range(4):
        a(f"buffer_load_dwordx4 v[{KT+4*q}:{KT+4*q+3}], v4, s[52:55], s7 offen offset:{1024*q}")
    a("v_mov_b32 v5, 0")
    a("buffer_load_ushort v6, v5, s[60:63], s9 offen")
    X = 128
    a("v_and_b32 v7, 31, v2")
    a("v_lshrrev_b32 v8, 2, v7")
    a("v_lshrrev_b32 v9, 5, v2")
    a("v_add_u32 v8, v8, v9")
    a("v_and_b32 v9, 3, v2")
    a("v_mul_u32_u24 v10, 40960, v8")
    a("v_lshl_add_u32 v10, v9, 4, v10")
    a("v_mov_b32 v12, 0x7fffffff")
    for e in range(-3, 1):
        sh = 1 - 2 * e
        a(f"v_subrev_u32 v11, {sh*40960}, v10")
        a(f"v_cmp_le_u32 vcc, {sh}, v8")
        a(f"v_cndmask_b32 v11, v12, v11, vcc")
        a(f"buffer_load_dwordx4 v[{X+4*(e+3)}:{X+4*(e+3)+3}], v11, s[48:51], s8 offen")
    a(f"s_add_u32 s10, s8, 40960")
    for e in range(1, 29):
        a(f"buffer_load_dwordx4 v[{X+4*(e+3)}:{X+4*(e+3)+3}], v10, s[48:51], s10 offen")
        if e < 28: a(f"s_add_u32 s10, s10, 81920")
    a("v_lshrrev_b32 v11, 5, v2")
    a("v_mul_u32_u24 v11, 40960, v11")
    a("v_lshl_add_u32 v11, v9, 4, v11")
    a("v_bfe_u32 v12, v2, 2, 3")
    a("v_lshl_add_u32 v11, v12, 1, v11")
    a("v_add_u32 v12, s6, v4")
    a("v_mov_b32 v32, 0"); a("v_mov_b32 v33, 0"); a("v_mov_b32 v34, 0"); a("v_mov_b32 v35, 0")
    a("ds_write_b128 v12, v[32:35]")
    a("s_waitcnt vmcnt(33)")
    for q in range(4):
        a(f"ds_write_b128 v12, v[{KT+4*q}:{KT+4*q+3}] offset:{64+1024*q}")
    a("v_bfe_u32 v13, v2, 4, 1")
    a("v_lshlrev_b32 v13, 4, v13")
    a("v_and_b32 v14, 3, v2")
    a("v_lshl_add_u32 v13, v14, 2, v13")
    a("v_bfe_u32 v14, v2, 2, 2")
    a("v_lshlrev_b32 v14, 2, v14")
    a("v_sub_u32 v13, v13, v14")
    a("v_lshrrev_b32 v14, 5, v2")
    a("v_lshlrev_b32 v14, 5, v14")
    a("v_sub_u32 v13, v13, v14")
    a("v_add_u32 v13, 48, v13")
    a("v_lshl_add_u32 v13, v13, 1, s6")
    a("v_lshl_add_u32 v14, v2, 1, s6")
    ACC = 64
    XN = 36
    C3, C2, C1 = 52, 53, 54
    T0, T1 = 56, 57
    a(f"v_mov_b32 v{C3}, 0"); a(f"v_mov_b32 v{C2}, 0"); a(f"v_mov_b32 v{C1}, 0")
    def kread(kap, buf):
        r = KT + 4 * buf
        a(f"ds_read_b64_tr_b16 v[{r}:{r+1}], v13 offset:{128*kap+32}")
        a(f"ds_read_b64_tr_b16 v[{r+2}:{r+3}], v13 offset:{128*kap}")
    for p in range(2):
        us = list(range(4 * p, 4 * p + 4))
        nk = 4 * us[-1] + 4
        for r in range(ACC, ACC + 64): a(f"v_mov_b32 v{r}, 0")
        a(f"s_add_u32 s10, s8, {81920*16*p}")
        for Q in range(16):
            a(f"buffer_load_ushort v{XN+Q}, v11, s[48:51], s10 offen")
            if Q < 15: a("s_add_u32 s10, s10, 81920")
        kread(0, 0); kread(1, 1); kread(2, 2)
        waited = -100
        for kap in range(nk):
            if kap + 3 < nk: kread(kap + 3, (kap + 3) % 4)
            rem = min(nk - 1, kap + 3) - kap
            a(f"s_waitcnt lgkmcnt({2*rem})")
            kb = KT + 4 * (kap % 4)
            for u in us:
                e = 4 * u - kap
                if e < -3: continue
                if p == 0 and e > waited:
                    a(f"s_waitcnt vmcnt({28 - e + 16})")
                    waited = e
                if p == 1 and waited < 100:
                    a(f"s_waitcnt vmcnt(16)")
                    waited = 100
                c = ACC + 16 * (u - us[0])
                x = X + 4 * (e + 3)
                a(f"v_mfma_f32_32x32x16_bf16 v[{c}:{c+15}], v[{x}:{x+3}], v[{kb}:{kb+3}], v[{c}:{c+15}]")
        if p == 0:
            a("v_lshlrev_b32 v6, 16, v6")
        a("s_waitcnt vmcnt(0)")
        z = lambda Q, r: ACC + 4 * Q + r
        def level(prevreg, cur, zr, carry):
            new = []
            for Q in range(16):
                pv = carry if Q == 0 else cur[Q - 1]
                a(f"v_add_f32_dpp v{pv}, v{pv}, v{z(Q, zr)} wave_ror:1 row_mask:0xf bank_mask:0xf")
                new.append(pv)
            for Q in range(16):
                pass
            return new
        def level2(cur, zr, carry):
            new = []
            for Q in range(16):
                pv = carry if Q == 0 else cur[Q - 1]
                a(f"v_add_f32_dpp v{pv}, v{pv}, v{z(Q, zr)} wave_ror:1 row_mask:0xf bank_mask:0xf")
                a(f"v_add_f32_dpp v{pv}, v{cur[Q]}, v{z(Q, zr)} wave_shr:1 row_mask:0xf bank_mask:0xf")
                new.append(pv)
            return new
        P3 = [z(Q, 3) for Q in range(16)]
        P2 = level2(P3, 2, C3)
        P1 = level2(P2, 1, C2)
        Y = level2(P1, 0, C1)
        for Q in range(16):
            a(f"v_lshlrev_b32 v{XN+Q}, 16, v{XN+Q}")
            a(f"v_mul_f32 v{XN+Q}, v6, v{XN+Q}")
            a(f"v_cvt_pk_bf16_f32 v{T0}, v{Y[Q]}, v{XN+Q}")
            a(f"v_lshlrev_b32 v{T1}, 16, v{T0}")
            a(f"v_and_b32 v{T0}, 0xffff0000, v{T0}")
            a(f"v_add_f32 v{T0}, v{T0}, v{T1}")
            a(f"v_cvt_pk_bf16_f32 v{XN+Q}, v{T0}, v{T0}")
            a(f"ds_write_b16 v14, v{XN+Q} offset:{CV_ST + 128*(16*p+Q)}")
        if p == 0:
            a(f"v_mov_b32 v{C3}, v{P3[15]}")
            a(f"v_mov_b32 v{C2}, v{P2[15]}")
            a(f"v_mov_b32 v{C1}, v{P1[15]}")
    for q in range(4):
        a(f"ds_read_b128 v[{KT+4*q}:{KT+4*q+3}], v12 offset:{CV_ST+1024*q}")
    for q in range(4):
        a(f"s_waitcnt lgkmcnt({3-q})")
        a(f"buffer_store_dwordx4 v[{KT+4*q}:{KT+4*q+3}], v4, s[56:59], s7 offen offset:{1024*q}" + (" sc1" if sc1 else ""))
    if flag: flag(a)
    a("s_endpgm")
```

```python
from common import *
import os
EXP = os.environ.get('G1EXP', '')

G1_SLOT = 16384
G1_NSLOT = 4
G1_LDS = G1_SLOT * G1_NSLOT

def role_gemm1(a, wg_s, flags=None):
    stamp(a, 0)
    srd(a, 48, P_U, 2621440)
    srd(a, 52, P_W1, 2211840)
    a(f"s_and_b32 s4, s{wg_s}, 7")
    a(f"s_lshr_b32 s5, s{wg_s}, 3")
    a("s_and_b32 s6, s4, 3")
    a("s_lshl_b32 s6, s6, 2")
    a("s_and_b32 s7, s5, 3")
    a("s_add_u32 s6, s6, s7")
    a("s_lshr_b32 s7, s4, 2")
    a("s_mul_i32 s7, s7, 7")
    a("s_lshr_b32 s8, s5, 2")
    a("s_add_u32 s7, s7, s8")
    a("v_and_b32 v2, 63, v0")
    a("v_lshrrev_b32 v3, 6, v0")
    a("v_readfirstlane_b32 s8, v3")
    a("v_lshrrev_b32 v4, 2, v2")
    a("v_mul_u32_u24 v4, 1280, v4")
    a("v_bfe_u32 v5, v2, 4, 2")
    a("v_and_b32 v6, 3, v2")
    a("v_xor_b32 v6, v6, v5")
    a("v_lshl_add_u32 v4, v6, 4, v4")
    a("v_mul_u32_u24 v7, 3456, v5")
    a("v_and_b32 v6, 15, v2")
    a("v_lshlrev_b32 v8, 2, v5")
    a("v_xor_b32 v6, v6, v8")
    a("v_lshl_add_u32 v5, v6, 4, v7")
    a("s_lshl_b32 s11, s6, 7")
    a("s_lshl_b32 s12, s8, 5")
    a("s_add_u32 s11, s11, s12")
    a("s_mul_i32 s11, s11, 1280")
    a("s_mul_i32 s12, s8, 27648")
    a("s_lshl_b32 s13, s7, 8")
    a("s_add_u32 s12, s12, s13")
    a("s_lshl_b32 s13, s8, 11")
    def dma_parts(slot):
        base = slot * G1_SLOT
        return [
            [f"s_add_u32 m0, s13, {base}", f"s_add_u32 s14, s11, 20480",
             f"buffer_load_dwordx4 v4, s[48:51], s11 offen lds"],
            [f"s_add_u32 m0, s13, {base+1024}", f"s_add_u32 s11, s11, 64",
             f"buffer_load_dwordx4 v4, s[48:51], s14 offen lds"],
            [f"s_add_u32 m0, s13, {base+8192}", f"s_add_u32 s14, s12, 13824",
             f"buffer_load_dwordx4 v5, s[52:55], s12 offen lds"],
            [f"s_add_u32 m0, s13, {base+8192+1024}", f"s_add_u32 s12, s12, 110592",
             f"buffer_load_dwordx4 v5, s[52:55], s14 offen lds"],
        ]
    for sl in range(3):
        for p in dma_parts(sl):
            for x in p: a(x)
    srd(a, 56, P_WS, SZ_H, WS_H)
    srd(a, 60, P_B1, 3456)
    srd(a, 64, P_WS, SZ_RST, WS_RST)
    srd(a, 68, P_WS, SZ_CS, WS_CS)
    a("s_and_b32 s9, s8, 1")
    a("s_lshr_b32 s10, s8, 1")
    a("v_and_b32 v6, 31, v2")
    a("v_lshrrev_b32 v7, 5, v2")
    a("v_bfe_u32 v8, v2, 2, 2")
    a("v_xor_b32 v8, v8, v7")
    a("v_lshlrev_b32 v9, 6, v6")
    a("v_lshl_add_u32 v9, v8, 4, v9")
    a("s_lshl_b32 s15, s10, 12")
    a("v_add_u32 v10, s15, v9")
    a("v_xor_b32 v11, 32, v10")
    a("s_lshl_b32 s15, s9, 1")
    a("s_add_u32 s14, s15, 1")
    a("v_bfe_u32 v14, v2, 4, 1")
    a("v_bfe_u32 v15, v2, 2, 2")
    a("v_and_b32 v16, 3, v2")
    a("v_lshlrev_b32 v17, 3, v7")
    a("v_add_u32 v17, v17, v15")
    a("v_lshlrev_b32 v17, 8, v17")
    a("v_lshl_add_u32 v17, v14, 5, v17")
    a("v_lshl_add_u32 v17, v16, 3, v17")
    a("v_add_u32 v17, 8192, v17")
    a("v_xor_b32 v18, s15, v15")
    a("v_lshl_add_u32 v14, v18, 6, v17")
    a("v_xor_b32 v18, s14, v15")
    a("v_lshl_add_u32 v15, v18, 6, v17")
    a("s_lshl_b32 s14, s7, 7")
    a("s_lshl_b32 s15, s9, 6")
    a("s_add_u32 s14, s14, s15")
    a("v_add_u32 v16, s14, v6")
    a("v_lshlrev_b32 v17, 2, v16")
    a("v_lshlrev_b32 v16, 1, v16")
    a("s_lshl_b32 s14, s6, 7")
    a("s_lshl_b32 s15, s10, 6")
    a("s_add_u32 s14, s14, s15")
    a("v_add_u32 v18, s14, v6")
    a("v_lshlrev_b32 v18, 3, v18")
    ACC = 64
    SA = 32
    SB = 48
    for r in range(ACC, ACC + 64): a(f"v_mov_b32 v{r}, 0")
    for r in range(SB, SB + 16): a(f"v_mov_b32 v{r}, 0")
    def reads(slot, h, S):
        base = slot * G1_SLOT
        if 'noread' in EXP: return [[], []]
        return [[f"ds_read_b64_tr_b16 v[{S}:{S+1}], v14 offset:{base+4096*h}",
                 f"ds_read_b64_tr_b16 v[{S+2}:{S+3}], v14 offset:{base+4096*h+1024}",
                 f"ds_read_b128 v[{S+8}:{S+11}], v{10+h} offset:{base}"],
                [f"ds_read_b128 v[{S+12}:{S+15}], v{10+h} offset:{base+2048}",
                 f"ds_read_b64_tr_b16 v[{S+4}:{S+5}], v15 offset:{base+4096*h}",
                 f"ds_read_b64_tr_b16 v[{S+6}:{S+7}], v15 offset:{base+4096*h+1024}"]]
    def mfmas(S, fill):
        n = 0
        for fi in range(2):
            for ti in range(2):
                c = ACC + 16 * (2 * fi + ti)
                a(f"v_mfma_f32_32x32x16_bf16 v[{c}:{c+15}], v[{S+4*fi}:{S+4*fi+3}], v[{S+8+4*ti}:{S+8+4*ti+3}], v[{c}:{c+15}]")
                if n < len(fill):
                    for x in fill[n]: a(x)
                n += 1
    def stage(u, do_dma, vm, extra=None):
        a(f"s_waitcnt vmcnt({vm}) lgkmcnt(0)")
        a("s_barrier")
        d = dma_parts((u + 3) % 4) if (do_dma and 'nodma' not in EXP) else [[], [], [], []]
        if extra: d = extra
        mfmas(SB, reads(u, 0, SA) + d[0:2])
        a("s_waitcnt lgkmcnt(0)")
        mfmas(SA, reads(u, 1, SB) + d[2:4])
    stamp(a, 1)
    a("s_mov_b32 s72, 0")
    lp = a.newlabel("g1loop")
    a.label(lp)
    for u in range(4): stage(u, True, 8)
    a("s_add_u32 s72, s72, 1")
    a("s_cmp_lt_u32 s72, 4")
    a(f"s_cbranch_scc1 {lp}")
    stage(0, True, 8)
    sfx = " sc1" if flags else ""
    statloads = [
        [f"buffer_load_dwordx2 v[128:129], v18, s[64:67], 0 offen{sfx}", f"buffer_load_dwordx2 v[130:131], v18, s[64:67], 0 offen offset:256{sfx}"],
        [f"buffer_load_dword v132, v17, s[68:71], 0 offen{sfx}", f"buffer_load_dword v133, v17, s[68:71], 0 offen offset:128{sfx}"],
        [f"buffer_load_ushort v134, v16, s[60:63], 0 offen", f"buffer_load_ushort v135, v16, s[60:63], 0 offen offset:64"],
        []]
    if flags is None:
        stage(1, False, 8, statloads)
        stage(2, False, 4 + 6)
        stage(3, False, 6)
    else:
        flags(a, stage, statloads)
    a("s_waitcnt lgkmcnt(0)")
    mfmas(SB, [])
    stamp(a, 3)
    a("v_cmp_gt_u32 vcc, 32, v2")
    a("s_mov_b64 s[74:75], vcc")
    a("s_waitcnt vmcnt(0)")
    for i in range(2):
        a(f"v_lshlrev_b32 v20, 16, v{129+2*i}")
        a(f"v_rcp_f32 v{152+4*i}, v20")
        a(f"v_cndmask_b32 v{136+4*i}, 0, v{128+2*i}, s[74:75]")
        a(f"v_cndmask_b32 v{137+4*i}, 0, v{129+2*i}, s[74:75]")
        a(f"v_mov_b32 v{138+4*i}, 0")
        a(f"v_mov_b32 v{139+4*i}, 0")
        a(f"v_cndmask_b32 v{144+4*i}, 0, v{132+i}, s[74:75]")
        a(f"v_cndmask_b32 v{145+4*i}, 0, v{134+i}, s[74:75]")
        a(f"v_mov_b32 v{146+4*i}, 0")
        a(f"v_mov_b32 v{147+4*i}, 0")
        a(f"v_mul_f32 v{154+4*i}, {LOG2E}, v{152+4*i}")
    for fi in range(2):
        for ti in range(2):
            c = ACC + 16 * (2 * fi + ti)
            a(f"v_mfma_f32_32x32x16_bf16 v[{c}:{c+15}], v[{144+4*fi}:{147+4*fi}], v[{136+4*ti}:{139+4*ti}], v[{c}:{c+15}]")
    stamp(a, 4)
    end = a.newlabel("g1end")
    a("s_cmp_eq_u32 s7, 13")
    a("s_cselect_b32 s14, s9, 0")
    a("s_cmp_lg_u32 s14, 0")
    a(f"s_cbranch_scc1 {end}")
    a("v_mov_b32 v160, 1.0")
    a("v_mov_b32 v161, 1.0")
    a("v_mov_b32 v162, -2.0")
    a("v_mov_b32 v163, -2.0")
    a("v_bfe_u32 v8, v2, 4, 1")
    a("v_mul_u32_u24 v8, 55296, v8")
    a("v_and_b32 v9, 15, v2")
    a("v_lshl_add_u32 v8, v9, 4, v8")
    a("v_lshl_add_u32 v8, v7, 8, v8")
    a("s_lshl_b32 s14, s6, 3")
    a("s_lshl_b32 s15, s10, 2")
    a("s_add_u32 s14, s14, s15")
    a("s_mul_i32 s14, s14, 54")
    a("s_lshl_b32 s15, s7, 2")
    a("s_add_u32 s14, s14, s15")
    a("s_lshl_b32 s15, s9, 1")
    a("s_add_u32 s14, s14, s15")
    a("s_lshl_b32 s14, s14, 10")
    for fi in range(2):
        for ti in range(2):
            c = ACC + 16 * (2 * fi + ti)
            rs = 152 + 4 * ti
            a(f"s_add_u32 s15, s14, {(ti*108+fi)*1024}")
            O = 168 + 8 * ((2 * fi + ti) & 1)
            for half in range(2):
                ps = range(4 * half, 4 * half + 4)
                T = lambda p: 32 + 2 * (p & 3) + 8 * half
                X = lambda p: c + 2 * p
                for p in ps: a(f"v_pk_mul_f32 v[{T(p)}:{T(p)+1}], v[{X(p)}:{X(p)+1}], v[{rs+2}:{rs+3}] op_sel_hi:[1,0]")
                for p in ps:
                    a(f"v_exp_f32 v{T(p)}, v{T(p)}")
                    a(f"v_exp_f32 v{T(p)+1}, v{T(p)+1}")
                    a(f"v_pk_mul_f32 v[{X(p)}:{X(p)+1}], v[{X(p)}:{X(p)+1}], v[{rs}:{rs+1}] op_sel_hi:[1,0]")
                for p in ps: a(f"v_pk_add_f32 v[{T(p)}:{T(p)+1}], v[{T(p)}:{T(p)+1}], v[160:161]")
                for p in ps: a(f"v_pk_fma_f32 v[{T(p)}:{T(p)+1}], v[{T(p)}:{T(p)+1}], v[{T(p)}:{T(p)+1}], v[160:161]")
                for p in ps:
                    a(f"v_rcp_f32 v{T(p)}, v{T(p)}")
                    a(f"v_rcp_f32 v{T(p)+1}, v{T(p)+1}")
                for p in ps: a(f"v_pk_fma_f32 v[{T(p)}:{T(p)+1}], v[{T(p)}:{T(p)+1}], v[162:163], v[160:161]")
                for p in ps: a(f"v_pk_mul_f32 v[{X(p)}:{X(p)+1}], v[{X(p)}:{X(p)+1}], v[{T(p)}:{T(p)+1}]")
                for p in ps: a(f"v_cvt_pk_bf16_f32 v{O+p}, v{X(p)}, v{X(p)+1}")
                b = O + 4 * half
                a(f"v_permlane32_swap_b32 v{b}, v{b+2}")
                a(f"v_permlane32_swap_b32 v{b+1}, v{b+3}")
                a(f"buffer_store_dwordx4 v[{b}:{b+3}], v8, s[56:59], s15 offen offset:{512*half}")
    a.label(end)
    stamp(a, 5)
    if STAMPS:
        a("s_waitcnt vmcnt(0)")
        stamp(a, 6)
        stamp_flush(a, 7, wg_s)
    a("s_endpgm")
```

```python
from common import *

G2_LDS = 61440

def role_gemm2(a, wg_s, wait_flag=None, sc1=False):
    stamp(a, 0)
    srd(a, 48, P_WS, SZ_H, WS_H)
    srd(a, 52, P_WS, SZ_W2T, WS_W2T)
    srd(a, 56, P_WS, SZ_ST, WS_ST)
    srd(a, 60, P_U, 2621440)
    srd(a, 64, P_OUT, 2621440)
    a(f"s_and_b32 s4, s{wg_s}, 7")
    a(f"s_lshr_b32 s5, s{wg_s}, 3")
    a("s_and_b32 s6, s4, 3")
    a("s_lshl_b32 s6, s6, 3")
    a("s_and_b32 s7, s5, 7")
    a("s_add_u32 s6, s6, s7")
    a("s_lshr_b32 s7, s4, 2")
    a("s_lshl_b32 s7, s7, 2")
    a("s_lshr_b32 s8, s5, 3")
    a("s_add_u32 s7, s7, s8")
    a("v_and_b32 v2, 63, v0")
    a("v_lshrrev_b32 v3, 6, v0")
    a("v_readfirstlane_b32 s8, v3")
    a("v_lshlrev_b32 v4, 4, v2")
    for i in range(1, 5):
        a(f"v_add_u32 v{4+i}, {55296*i}, v4")
    a("s_mul_i32 s9, s6, 221184")
    a("s_lshl_b32 s10, s8, 10")
    a("s_add_u32 s9, s9, s10")
    a("s_mul_i32 s11, s7, 276480")
    a("s_add_u32 s10, s11, s10")
    ACC = 16
    BUF = 96
    NST = 14
    def loads(st):
        b = BUF + 36 * (st % 4)
        if st == NST - 1:
            a("s_cmp_lt_u32 s8, 2")
            a("s_cselect_b32 s9, s9, 0x7f000000")
            a("s_cselect_b32 s10, s10, 0x7f000000")
        for j in range(5):
            a(f"buffer_load_dwordx4 v[{b+16+4*j}:{b+16+4*j+3}], v{4+j}, s[52:55], s10 offen")
            if j < 4:
                a(f"buffer_load_dwordx4 v[{b+4*j}:{b+4*j+3}], v{4+j}, s[48:51], s9 offen")
        if st < NST - 1:
            a("s_add_u32 s9, s9, 4096")
            a("s_add_u32 s10, s10, 4096")
    loads(0); loads(1); loads(2)
    for r in range(ACC, ACC + 80): a(f"v_mov_b32 v{r}, 0")
    a("v_and_b32 v9, 15, v2")
    a("v_lshrrev_b32 v10, 4, v2")
    a("s_lshl_b32 s11, s6, 6")
    a("s_lshl_b32 s12, s8, 4")
    a("s_add_u32 s11, s11, s12")
    a("v_add_u32 v11, s11, v9")
    a("s_mul_i32 s12, s7, 80")
    a("v_lshl_add_u32 v12, v10, 2, s12")
    a("v_mul_u32_u24 v13, 1280, v11")
    a("v_lshl_add_u32 v13, v12, 1, v13")
    a("v_lshlrev_b32 v14, 12, v12")
    a("v_lshl_add_u32 v14, v11, 1, v14")
    stamp(a, 1)
    for st in range(NST):
        if st + 3 < NST: loads(st + 3)
        rem = min(NST - 1, st + 3) - st
        a(f"s_waitcnt vmcnt({9*rem})")
        if st == 0: stamp(a, 2)
        b = BUF + 36 * (st % 4)
        for j in range(5):
            for i in range(4):
                c = ACC + 4 * (4 * j + i)
                a(f"v_mfma_f32_16x16x32_bf16 v[{c}:{c+3}], v[{b+16+4*j}:{b+16+4*j+3}], v[{b+4*i}:{b+4*i+3}], v[{c}:{c+3}]")
    stamp(a, 3)
    XR = 96
    for j in range(5):
        a(f"buffer_load_dwordx2 v[{XR+2*j}:{XR+2*j+1}], v13, s[60:63], 0 offen offset:{32*j}")
    for i in range(4):
        lab = a.newlabel("g2w")
        a(f"s_cmp_eq_u32 s8, {i}")
        a(f"s_cbranch_scc1 {lab}")
        a(f"s_sub_u32 s13, s8, {i+1}")
        a("s_and_b32 s13, s13, 3")
        a(f"s_add_u32 s13, s13, {3*i}")
        a("s_mul_i32 s13, s13, 5120")
        a("v_add_u32 v15, s13, v4")
        for j in range(5):
            c = ACC + 4 * (4 * j + i)
            a(f"ds_write_b128 v15, v[{c}:{c+3}] offset:{1024*j}")
        a.label(lab)
        a.flush_hazards()
    O = 112
    done = a.newlabel("g2own")
    for i in range(4):
        lab = a.newlabel("g2o")
        a(f"s_cmp_lg_u32 s8, {i}")
        a(f"s_cbranch_scc1 {lab}")
        for j in range(5):
            c = ACC + 4 * (4 * j + i)
            for r in range(4): a(f"v_mov_b32 v{O+4*j+r}, v{c+r}")
        a.label(lab)
    a("s_waitcnt lgkmcnt(0)")
    a("s_barrier")
    if wait_flag: wait_flag(a)
    SR = 136
    for j in range(5):
        for r in range(4):
            a(f"s_mov_b32 s13, {(16*j+r)*4096}")
            a(f"buffer_load_ushort v{SR+4*j+r}, v14, s[56:59], s13 offen" + (" sc1" if sc1 else ""))
    a("s_mul_i32 s13, s8, 15360")
    a("v_add_u32 v15, s13, v4")
    P = 16
    for sl in range(3):
        for j in range(5):
            a(f"ds_read_b128 v[{P+20*sl+4*j}:{P+20*sl+4*j+3}], v15 offset:{5120*sl+1024*j}")
    for sl in range(3):
        a(f"s_waitcnt lgkmcnt({5*(2-sl)})")
        for k in range(0, 20, 2):
            a(f"v_pk_add_f32 v[{O+k}:{O+k+1}], v[{O+k}:{O+k+1}], v[{P+20*sl+k}:{P+20*sl+k+1}]")
    stamp(a, 4)
    a(f"s_mov_b32 s13, {LOG2E ^ 0x80000000}")
    for k in range(0, 20, 2):
        a(f"v_cvt_pk_bf16_f32 v16, v{O+k}, v{O+k+1}")
        a(f"v_lshlrev_b32 v{O+k}, 16, v16")
        a(f"v_and_b32 v{O+k+1}, 0xffff0000, v16")
        a(f"v_mul_f32 v16, s13, v{O+k}")
        a(f"v_mul_f32 v17, s13, v{O+k+1}")
        a(f"v_exp_f32 v16, v16")
        a(f"v_exp_f32 v17, v17")
        a(f"v_add_f32 v16, 1.0, v16")
        a(f"v_add_f32 v17, 1.0, v17")
        a(f"v_rcp_f32 v16, v16")
        a(f"v_rcp_f32 v17, v17")
        a(f"v_mul_f32 v16, v16, v{O+k}")
        a(f"v_mul_f32 v17, v17, v{O+k+1}")
        a(f"v_cvt_pk_bf16_f32 v16, v16, v17")
        a(f"v_lshlrev_b32 v{O+k}, 16, v16")
        a(f"v_and_b32 v{O+k+1}, 0xffff0000, v16")
    a("s_waitcnt vmcnt(0)")
    for k in range(0, 20, 2):
        a(f"v_lshlrev_b32 v16, 16, v{SR+k}")
        a(f"v_lshlrev_b32 v17, 16, v{SR+k+1}")
        a(f"v_mul_f32 v16, v16, v{O+k}")
        a(f"v_mul_f32 v17, v17, v{O+k+1}")
        a(f"v_cvt_pk_bf16_f32 v16, v16, v17")
        a(f"v_and_b32 v17, 0xffff0000, v16")
        a(f"v_lshlrev_b32 v16, 16, v16")
        xr = XR + k // 2
        a(f"v_lshlrev_b32 v18, 16, v{xr}")
        a(f"v_and_b32 v19, 0xffff0000, v{xr}")
        a(f"v_add_f32 v16, v16, v18")
        a(f"v_add_f32 v17, v17, v19")
        a(f"v_cvt_pk_bf16_f32 v{xr}, v16, v17")
    for j in range(5):
        a(f"buffer_store_dwordx2 v[{XR+2*j}:{XR+2*j+1}], v13, s[64:67], 0 offen offset:{32*j}")
    stamp(a, 5)
    if STAMPS:
        a("s_waitcnt vmcnt(0)")
        stamp(a, 6)
        stamp_flush(a, 7, wg_s, base=0x10000)
    a("s_endpgm")
```

```python
from common import *

KG_ROW = 272
KG_LO = 16 * KG_ROW
KG_TAB = 2 * KG_LO
KG_LDS = 10240

def role_kgen(a, wg_s):
    for i, p in enumerate((P_ARE, P_AIM, P_BRE, P_BIM, P_CRE, P_CIM)):
        srd(a, 48 + 4 * i, p, 163840)
    srd(a, 72, P_LDT, 1280)
    srd(a, 76, P_WS, SZ_K, WS_K)
    a("v_and_b32 v2, 63, v0")
    a("v_lshrrev_b32 v3, 6, v0")
    a("v_readfirstlane_b32 s4, v3")
    a(f"s_lshl_b32 s5, s{wg_s}, 2")
    a("s_add_u32 s5, s5, s4")
    a(f"s_mul_i32 s6, s4, {KG_LDS}")
    a("s_lshl_b32 s7, s5, 8")
    a("s_lshl_b32 s8, s5, 1")
    a("v_lshlrev_b32 v4, 1, v2")
    a("v_mov_b32 v5, 0")
    a("buffer_load_ushort v6, v5, s[72:75], s8 offen")
    for h in range(2):
        for i in range(6):
            a(f"buffer_load_ushort v{8+6*h+i}, v4, s[{48+4*i}:{51+4*i}], s7 offen offset:{128*h}")
    a("v_lshlrev_b32 v20, 2, v2")
    a("v_add_u32 v20, s6, v20")
    a("v_and_b32 v21, 15, v2")
    a(f"v_mul_u32_u24 v21, {KG_ROW}, v21")
    a("v_lshrrev_b32 v22, 4, v2")
    a("v_lshlrev_b32 v23, 4, v22")
    a("v_add3_u32 v21, v21, v23, s6")
    a("s_mov_b32 s9, 0x07060302")
    a(f"s_mov_b32 s10, {LOG2E}")
    a(f"s_mov_b32 s11, {INV2PI}")
    for r in range(24, 36): a(f"v_mov_b32 v{r}, 0")
    a("s_waitcnt vmcnt(12)")
    a("v_lshlrev_b32 v6, 16, v6")
    a("v_mul_f32 v7, s10, v6")
    a("v_fma_f32 v5, v6, s10, -v7")
    a(f"v_mov_b32 v36, {LOG2E_LO}")
    a("v_fmac_f32 v5, v6, v36")
    a("v_exp_f32 v7, v7")
    a(f"v_mul_f32 v5, {LN2}, v5")
    a("v_fmac_f32 v7, v7, v5")
    a("v_cvt_pk_bf16_f32 v7, v7, v7")
    a("v_lshlrev_b32 v7, 16, v7")

    A2, B2 = 36, 37
    C = (38, 39)
    T0, T1, T2, T3 = 40, 41, 42, 43
    W1, W8, W128, W1024 = (44, 45), (46, 47), (48, 49), (50, 51)
    E = {e: (52 + 2 * (e - 1), 53 + 2 * (e - 1)) for e in range(1, 8)}
    H = {i: (66 + 2 * (i - 1), 67 + 2 * (i - 1)) for i in range(1, 17)}
    FA, FB = (98, 99), (100, 101)
    G = (102, 103)
    S0, S1, S2, S3 = 104, 105, 106, 107
    FH = 108
    FL = 124
    GH = 140
    GL = 156

    def cmul(d, x, y):
        a(f"v_pk_mul_f32 v[{T0}:{T1}], v[{x[0]}:{x[1]}], v[{y[0]}:{y[1]}] op_sel:[1,1] op_sel_hi:[1,0] neg_lo:[1,0]")
        a(f"v_pk_fma_f32 v[{d[0]}:{d[1]}], v[{x[0]}:{x[1]}], v[{y[0]}:{y[1]}], v[{T0}:{T1}] op_sel:[0,0,0] op_sel_hi:[0,1,1]")
    def cexp(d, val):
        import struct
        lit = "0x%08x" % struct.unpack("<I", struct.pack("<f", float(val)))[0]
        a(f"v_mul_f32 v{T0}, {lit}, v{A2}")
        a(f"v_mul_f32 v{T1}, {lit}, v{B2}")
        a(f"v_exp_f32 v{T0}, v{T0}")
        a(f"v_fract_f32 v{T1}, v{T1}")
        a(f"v_cos_f32 v{T2}, v{T1}")
        a(f"v_sin_f32 v{T3}, v{T1}")
        a(f"v_mul_f32 v{d[0]}, v{T0}, v{T2}")
        a(f"v_mul_f32 v{d[1]}, v{T0}, v{T3}")
    def put2(row, x):
        re, im = x
        a(f"v_cvt_pk_bf16_f32 v{S0}, v{re}, v{im}")
        a(f"v_lshlrev_b32 v{S2}, 16, v{S0}")
        a(f"v_and_b32 v{S3}, 0xffff0000, v{S0}")
        a(f"ds_write_b32 v20, v{S0} offset:{row*KG_ROW}")
        a(f"v_pk_add_f32 v[{S2}:{S3}], v[{re}:{im}], v[{S2}:{S3}] neg_lo:[0,1] neg_hi:[0,1]")
        a(f"v_cvt_pk_bf16_f32 v{S1}, v{S2}, v{S3}")
        a(f"ds_write_b32 v20, v{S1} offset:{row*KG_ROW+KG_LO}")
    pc = [0]
    def put(row, x):
        re, im = x
        r = (S0, S1)[pc[0] & 1]; pc[0] += 1
        a(f"v_cvt_pk_bf16_f32 v{r}, v{re}, v{im}")
        a(f"ds_write_b32 v20, v{r} offset:{row*KG_ROW}")
    def put_one(row):
        a(f"v_mov_b32 v{S0}, 0x3f80")
        a(f"ds_write_b32 v20, v{S0} offset:{row*KG_ROW}")
    def readfr(hi, lo=None):
        for ks in range(4):
            a(f"ds_read_b128 v[{hi+4*ks}:{hi+4*ks+3}], v21 offset:{64*ks}")
            if lo is not None:
                a(f"ds_read_b128 v[{lo+4*ks}:{lo+4*ks+3}], v21 offset:{64*ks+KG_LO}")
    def mm(t):
        acc = f"v[{24+4*t}:{27+4*t}]"
        a("s_waitcnt lgkmcnt(0)")
        for ks in range(4):
            gh = f"v[{GH+4*ks}:{GH+4*ks+3}]"
            fh = f"v[{FH+4*ks}:{FH+4*ks+3}]"; fl = f"v[{FL+4*ks}:{FL+4*ks+3}]"
            a(f"v_mfma_f32_16x16x32_bf16 {acc}, {gh}, {fh}, {acc}")
            a(f"v_mfma_f32_16x16x32_bf16 {acc}, {gh}, {fl}, {acc}")

    for h in range(2):
        p = 8 + 6 * h
        a(f"s_waitcnt vmcnt({6 - 6*h})")
        for i in range(6): a(f"v_lshlrev_b32 v{p+i}, 16, v{p+i}")
        a(f"v_mul_f32 v{A2}, v7, v{p}")
        a(f"v_mul_f32 v{B2}, v7, v{p+1}")
        a(f"v_mul_f32 v{A2}, s10, v{A2}")
        a(f"v_mul_f32 v{B2}, s11, v{B2}")
        a(f"v_mul_f32 v{p+2}, v7, v{p+2}")
        a(f"v_mul_f32 v{p+3}, v7, v{p+3}")
        cmul(C, (p + 4, p + 5), (p + 2, p + 3))
        cexp(W8, 8)
        a(f"v_xor_b32 v{C[1]}, 0x80000000, v{C[1]}")
        a(f"v_xor_b32 v{W8[1]}, 0x80000000, v{W8[1]}")
        cur = C
        for j in range(16):
            put2(j, cur)
            if j < 15:
                nxt = FA if cur != FA else FB
                cmul(nxt, cur, W8)
                cur = nxt
        readfr(FH, FL)
        cexp(W1, 1)
        cexp(W128, 128)
        cexp(W1024, 1024)
        a(f"v_mov_b32 v{E[1][0]}, v{W1[0]}")
        a(f"v_mov_b32 v{E[1][1]}, v{W1[1]}")
        for e in range(2, 8): cmul(E[e], E[e - 1], W1)
        a(f"v_mov_b32 v{H[1][0]}, v{W128[0]}")
        a(f"v_mov_b32 v{H[1][1]}, v{W128[1]}")
        for i in range(2, 8): cmul(H[i], H[i - 1], W128)
        a(f"v_mov_b32 v{H[8][0]}, v{W1024[0]}")
        a(f"v_mov_b32 v{H[8][1]}, v{W1024[1]}")
        for i in range(9, 17): cmul(H[i], H[i - 8], W1024)
        put_one(0)
        for e in range(1, 8): put(e, E[e])
        put(8, H[1])
        for e in range(1, 8):
            cmul(G, H[1], E[e]); put(8 + e, G)
        readfr(GH)
        mm(0)
        for i in range(2):
            put(4 * i, H[2 + i])
            for e in range(1, 4):
                cmul(G, H[2 + i], E[2 * e]); put(4 * i + e, G)
        for i in range(4):
            put(8 + 2 * i, H[4 + i])
            cmul(G, H[4 + i], E[4]); put(9 + 2 * i, G)
        readfr(GH)
        mm(1)
        for i in range(9): put(i, H[8 + i])
        readfr(GH)
        mm(2)
    a("v_and_b32 v40, 15, v2")
    a("v_lshlrev_b32 v40, 3, v40")
    a("v_lshrrev_b32 v41, 1, v22")
    a("v_and_b32 v42, 1, v22")
    a("v_lshlrev_b32 v43, 7, v41")
    a("v_lshl_add_u32 v43, v42, 2, v43")
    a("v_add_u32 v43, v43, v40")
    a("v_cmp_gt_u32 vcc, 2, v22")
    a("v_lshlrev_b32 v44, 7, v22")
    a("v_add_u32 v44, 256, v44")
    a("v_lshlrev_b32 v45, 8, v22")
    a("v_cndmask_b32 v44, v45, v44, vcc")
    a("v_add_u32 v44, v44, v40")
    a("s_mov_b64 s[12:13], vcc")
    a("v_lshlrev_b32 v45, 9, v22")
    a("v_add_u32 v45, 1024, v45")
    a("v_add_u32 v45, v45, v40")
    a(f"s_add_u32 s14, s6, {KG_TAB}")
    a(f"s_add_u32 s15, s14, {(128 - 0x4300) * 2 & 0xffffffff}")
    pat1 = (0, 2, 4, 6); pat2 = (0, 4, 128, 132)
    for t in range(3):
        for r in range(4):
            if t == 0: a(f"v_add_u32 v46, {r}, v43")
            elif t == 1:
                a(f"v_mov_b32 v46, {pat2[r]}")
                a(f"v_mov_b32 v47, {pat1[r]}")
                a(f"v_cndmask_b32 v46, v46, v47, s[12:13]")
                a(f"v_add_u32 v46, v46, v44")
            else: a(f"v_add_u32 v46, {128*r}, v45")
            a("v_cvt_f32_u32 v47, v46")
            a("v_lshrrev_b32 v47, 16, v47")
            a("v_lshl_add_u32 v47, v47, 1, s15")
            if t == 0:
                a("v_lshl_add_u32 v48, v46, 1, s14")
                a("v_cmp_gt_u32 vcc, 128, v46")
                a("v_cndmask_b32 v47, v47, v48, vcc")
            if t == 2:
                a(f"v_mov_b32 v48, s14")
                a(f"v_add_u32 v48, {2*700}, v48")
                a("v_cmp_lt_u32 vcc, 2048, v46")
                a("v_cndmask_b32 v47, v47, v48, vcc")
            a(f"v_cvt_pk_bf16_f32 v49, v{24+4*t+r}, v{24+4*t+r}")
            a("ds_write_b16 v47, v49")
    a("v_lshlrev_b32 v40, 3, v2")
    a("v_cmp_gt_u32 vcc, 16, v2")
    a("v_add_u32 v41, 128, v40")
    a("v_cndmask_b32 v41, v40, v41, vcc")
    a("v_mov_b32 v42, s15")
    a("v_subrev_u32 v43, 256, v42")
    a("v_cndmask_b32 v42, v42, v43, vcc")
    for q in range(4):
        for e2 in range(4):
            d = 52 + 4 * q + e2
            if q == 0:
                a(f"v_add_u32 v44, {2*e2}, v41")
                a(f"v_add_u32 v45, {2*e2+1}, v41")
            else:
                a(f"v_add_u32 v44, {512*q+2*e2}, v40")
                a(f"v_add_u32 v45, {512*q+2*e2+1}, v40")
            a("v_cvt_f32_u32 v44, v44")
            a("v_cvt_f32_u32 v45, v45")
            a("v_cvt_pk_bf16_f32 v44, v44, v45")
            a("v_lshrrev_b32 v45, 16, v44")
            a("v_and_b32 v44, 0xffff, v44")
            c = "v42" if q == 0 else "s15"
            a(f"v_lshl_add_u32 v44, v44, 1, {c}")
            a(f"v_lshl_add_u32 v45, v45, 1, {c}")
            a(f"ds_read_u16 v{d}, v44")
            a(f"ds_read_u16_d16_hi v{d+16}, v45")
    a("v_lshlrev_b32 v40, 4, v2")
    a("s_lshl_b32 s7, s5, 12")
    a("s_waitcnt lgkmcnt(0)")
    for r in range(16): a(f"v_or_b32 v{52+r}, v{52+r}, v{68+r}")
    for q in range(4):
        a(f"buffer_store_dwordx4 v[{52+4*q}:{55+4*q}], v40, s[76:79], s7 offen offset:{1024*q}")
    a("s_endpgm")
```

```python
from build import *
def role_empty(a, wg_s):
    a("s_endpgm")
base = [
        ("aux_kernel", [(64, role_lnt), (27, role_colsum), (54, role_w2t), (160, role_kgen)], 65536, 256),
        ("g1_kernel", [(224, role_gemm1)], G1_LDS, 256),
        ("conv_kernel", [(160, role_conv)], 4 * CV_LDS, 256),
        ("g2_kernel", [(256, role_gemm2)], G2_LDS, 256),
    ]
build(base + [("e1_kernel", [(256, role_empty)], 0, 32), ("e2_kernel", [(256, role_empty)], 0, 32)], "cal2.s")
build(base + [("e%d_kernel" % i, [(256, role_empty)], 0, 32) for i in range(4)], "cal4.s")
build(base, "cal0.s")
```

```python
import re

TRANS = ("v_exp_f32", "v_log_f32", "v_rcp_f32", "v_rsq_f32", "v_sqrt_f32", "v_sin_f32", "v_cos_f32",
         "v_rcp_iflag_f32")

def _regs(op):
    op = op.strip()
    op = re.sub(r'^-', '', op)
    m = re.match(r'^(?:abs|neg)\((.*)\)$', op)
    if m: op = m.group(1)
    op = op.strip('|')
    m = re.match(r'^([vsa])(\d+)$', op)
    if m: return [(m.group(1), int(m.group(2)))]
    m = re.match(r'^([vsa])\[(\d+):(\d+)\]$', op)
    if m: return [(m.group(1), i) for i in range(int(m.group(2)), int(m.group(3)) + 1)]
    if op in ('vcc', 'exec', 'm0', 'vcc_lo', 'vcc_hi', 'exec_lo', 'exec_hi', 'scc'):
        return [('x', op.split('_')[0])]
    return []

class Ins:
    __slots__ = ("mn", "dst", "src", "kind", "passes", "text", "srcC", "srcAB", "dpp", "storedata")

def mfma_passes(mn):
    if "32x32x16" in mn or "32x32x8" in mn: return 8
    if "16x16x32" in mn or "16x16x16" in mn: return 4
    if "4x4x4" in mn: return 2
    if "32x32x2_f32" in mn: return 16
    if "16x16x4_f32" in mn: return 8
    raise Exception(mn)

def parse(text):
    t = text.split(';')[0].strip()
    if not t or t.endswith(':') or t.startswith('.'): return None
    parts = t.split(None, 1)
    mn = parts[0]
    rest = parts[1] if len(parts) > 1 else ""
    extra = " ".join(re.findall(r'\b[a-z_]+:\[[^\]]*\]', rest))
    rest = re.sub(r'\b[a-z_]+:\[[^\]]*\]', '', rest).strip()
    ops = [o.strip() for o in rest.split(',')] if rest else []
    mods = ""
    if ops:
        last = ops[-1].split(None, 1)
        ops[-1] = last[0]
        mods = last[1] if len(last) > 1 else ""
    mods = mods + " " + extra
    i = Ins(); i.mn = mn; i.text = text; i.dst = []; i.src = []; i.passes = 0; i.srcC = []; i.srcAB = []
    i.dpp = ("_dpp" in mn) or ("row_" in mods) or ("wave_" in mods) or ("quad_perm" in mods)
    i.storedata = []
    base = re.sub(r'_(e32|e64|dpp|sdwa)$', '', mn)
    if base.startswith("v_mfma"):
        i.kind = "mfma"; i.passes = mfma_passes(base)
        i.dst = _regs(ops[0]); i.srcAB = _regs(ops[1]) + _regs(ops[2]); i.srcC = _regs(ops[3])
        i.src = i.srcAB + i.srcC
    elif base.startswith("v_"):
        i.kind = "trans" if base in TRANS else "valu"
        nd = 1
        if base.startswith(("v_add_co", "v_sub_co", "v_addc_co", "v_subb_co", "v_subrev_co", "v_div_scale", "v_mad_u64")): nd = 2
        if base.startswith("v_permlane") and "swap" in base:
            i.dst = _regs(ops[0]) + _regs(ops[1]); i.src = list(i.dst); i.kind = "permlane"
        else:
            for o in ops[:nd]: i.dst += _regs(o)
            for o in ops[nd:]: i.src += _regs(o)
            if base.startswith(("v_fmac", "v_dot2c", "v_pk_fmac", "v_writelane")) or i.dpp: i.src += _regs(ops[0])
            if base.startswith("v_cmpx"): i.dst += [('x', 'exec')]
            if base.startswith("v_div_fmas"): i.src += [('x', 'vcc')]
        if base.startswith(("v_readlane", "v_readfirstlane")): i.kind = "readlane"
    elif base.startswith("s_"):
        i.kind = "salu"
        if base in ("s_nop", "s_waitcnt", "s_barrier", "s_endpgm", "s_setprio", "s_sleep", "s_branch") or base.startswith("s_cbranch"):
            pass
        elif base.startswith("s_cmp"):
            for o in ops: i.src += _regs(o)
        else:
            i.dst = _regs(ops[0])
            for o in ops[1:]: i.src += _regs(o)
            if "saveexec" in base: i.dst += [('x', 'exec')]
    elif base.startswith(("buffer_", "global_", "ds_", "flat_")):
        i.kind = "mem"
        isload = ("load" in base or "read" in base or "bpermute" in base or "swizzle" in base or "permute" in base)
        lds = (" lds" in (" " + mods)) or "load_lds" in base
        if base in ("buffer_wbl2", "buffer_inv"):
            pass
        elif isload and not lds:
            i.dst = _regs(ops[0])
            for o in ops[1:]: i.src += _regs(o)
        else:
            for o in ops: i.src += _regs(o)
            if lds: i.src += [('x', 'm0')]; i.kind = "ldsdma"
            if "store" in base and ("x4" in base or "x3" in base):
                dop = ops[0] if base.startswith("buffer_") else ops[1]
                i.storedata = _regs(dop)
            if "atomic" in base and "sc0" in mods:
                i.dst = _regs(ops[0])
    else:
        raise Exception("unknown instr " + text)
    return i

class Asm:
    def __init__(self):
        self.lines = []
        self.hist = []
        self.nops = 0
        self.uid = 0
    def raw(self, s):
        self.lines.append(s)
    def label(self, name):
        self.lines.append(name + ":")
    def newlabel(self, p="L"):
        self.uid += 1
        return f"{p}_{self.uid}"
    def flush_hazards(self, n=20):
        need = 0
        dist = 0
        for p in reversed(self.hist):
            if p.kind == "mfma":
                need = max(need, {2: 5, 4: 8, 8: 12, 16: 20}[p.passes] - dist)
            elif p.kind in ("valu", "trans", "readlane", "permlane"):
                need = max(need, 5 - dist)
            dist += self._ws(p)
            if dist > 24: break
        if need > 0: self._nop(need)
    def _ws(self, p):
        if p.mn == "s_nop":
            return int(p.text.split()[1]) + 1
        return 1
    def _nop(self, n):
        while n > 0:
            k = min(n, 16)
            t = f"s_nop {k-1}"
            self.lines.append("  " + t)
            self.hist.append(parse(t)); self.nops += 1
            n -= k
    def __call__(self, text):
        for ln in text.split("\n"):
            ln = ln.strip()
            if not ln: continue
            if ln.startswith(";"):
                self.lines.append("  " + ln); continue
            i = parse(ln)
            if i is None:
                self.lines.append(ln); continue
            need = self._need(i)
            if need > 0: self._nop(need)
            self.lines.append("  " + ln)
            self.hist.append(i)
            if len(self.hist) > 40: self.hist = self.hist[-40:]
    def _need(self, c):
        need = 0; dist = 0
        VAL = ("valu", "trans", "readlane", "permlane")
        csrc = set(c.src); cdst = set(c.dst)
        for p in reversed(self.hist):
            pd = set(p.dst)
            req = 0
            if p.kind in VAL:
                vd = {r for r in pd if r[0] in 'va'}
                sd = {r for r in pd if r[0] in 'sx'}
                if vd & csrc:
                    if c.kind == "readlane": req = max(req, 1)
                    if c.kind == "permlane": req = max(req, 2)
                    if c.dpp: req = max(req, 2)
                    if c.kind == "mfma": req = max(req, 2)
                    if p.kind == "trans" and c.kind in ("valu", "readlane", "permlane", "mfma"): req = max(req, 1)
                if sd & csrc:
                    if c.kind in ("mem", "ldsdma"): req = max(req, 5)
                    if c.kind in VAL or c.kind == "mfma": req = max(req, 2)
                    if c.kind == "readlane" : req = max(req, 4)
                    if c.mn.startswith("v_div_fmas"): req = max(req, 4)
                    if c.kind == "salu": req = max(req, 1)
                if p.mn.startswith("v_dot") and vd & (csrc | cdst):
                    if not (c.mn == p.mn and c.src[-1:] == p.dst[-1:] and not (vd & set(c.src[:-1]))):
                        req = max(req, 3)
                if ('x', 'exec') in pd:
                    if c.dpp: req = max(req, 5)
                    if c.kind in ("readlane", "permlane", "mfma"): req = max(req, 4)
            if p.kind == "salu":
                if ('x', 'm0') in pd and c.kind == "ldsdma": req = max(req, 1)
            if p.kind == "mfma":
                n = p.passes
                if c.kind == "mfma":
                    if pd & set(c.srcAB): req = max(req, {2: 5, 4: 8, 8: 12, 16: 20}[n])
                    if pd & set(c.srcC):
                        if not (set(c.srcC) == pd and c.passes == n): req = max(req, {2: 4, 4: 6, 8: 10, 16: 18}[n])
                        elif n == 2: req = max(req, 2)
                elif c.kind in VAL or c.kind in ("mem", "ldsdma"):
                    if pd & (csrc | cdst): req = max(req, {2: 5, 4: 8, 8: 12, 16: 20}[n])
                if c.kind in VAL and set(p.srcC) & cdst:
                    req = max(req, {2: 1, 4: 3, 8: 7, 16: 15}[n])
            if p.storedata and (set(p.storedata) & cdst):
                req = max(req, 2)
            if req - dist > need: need = req - dist
            dist += self._ws(p)
            if dist > 24: break
        return need
    def text(self):
        return "\n".join(self.lines) + "\n"

def kdesc(name, vgpr, sgpr=102, accum=None):
    if accum is None: accum = (min(vgpr, 256) + 3) // 4 * 4
    return f""".p2align 6
.amdhsa_kernel {name}
  .amdhsa_next_free_vgpr {vgpr}
  .amdhsa_next_free_sgpr {sgpr}
  .amdhsa_accum_offset {accum}
  .amdhsa_group_segment_fixed_size 0
  .amdhsa_kernarg_size 128
  .amdhsa_user_sgpr_count 2
  .amdhsa_user_sgpr_kernarg_segment_ptr 1
  .amdhsa_system_sgpr_workgroup_id_x 1
.end_amdhsa_kernel
"""
```

```python
from asmlib import *

WS_XNP = 0x0
SZ_XNP = 2621440
WS_K = 0x280000
SZ_K = 2621440
WS_W2T = 0x500000
SZ_W2T = 2211840
WS_H = 0x800000
SZ_H = 7077888
WS_ST = 0x1000000
SZ_ST = 2621440

WS_RST = 0x1400000
SZ_RST = 16384
WS_CS = 0x1410000
SZ_CS = 7168

WS_FLG = 0x1420000
SZ_FLG = 2048

P_U, P_ARE, P_AIM, P_BRE, P_BIM, P_CRE, P_CIM, P_LDT, P_DSK, P_BX, P_W1, P_B1, P_W2, P_OUT, P_DBG, P_WS = range(16)
def ptr(i): return 16 + 2 * i

def prologue(a):
    a("s_load_dwordx16 s[16:31], s[0:1], 0")
    a("s_load_dwordx16 s[32:47], s[0:1], 64")

def srd(a, sd, p, nbytes, off=0):
    b = ptr(p)
    if off:
        a(f"s_add_u32 s{sd}, s{b}, {off}")
        a(f"s_addc_u32 s{sd+1}, s{b+1}, 0")
    else:
        a(f"s_mov_b32 s{sd}, s{b}")
        a(f"s_mov_b32 s{sd+1}, s{b+1}")
    a(f"s_mov_b32 s{sd+2}, {nbytes}")
    a(f"s_mov_b32 s{sd+3}, 0x20000")

LOG2E = 0x3fb8aa3b
LOG2E_LO = 0x32a5705f
LN2 = 0x3f317218
INV2PI = 0x3e22f983

WS_STAMP = 0x2000000
import os
STAMPS = os.environ.get("STAMPS", "0") == "1"
def stamp(a, idx):
    if not STAMPS: return
    a(f"s_memtime s[92:93]")
    a(f"s_waitcnt lgkmcnt(0)")
    a(f"s_mov_b32 s{84+idx}, s92")
def stamp_flush(a, n, wg_s=2, base=0):
    if not STAMPS: return
    a(f"s_add_u32 s96, s{ptr(P_WS)}, {WS_STAMP + base}")
    a(f"s_addc_u32 s97, s{ptr(P_WS)+1}, 0")
    a(f"s_mov_b32 s98, 0x100000")
    a(f"s_mov_b32 s99, 0x20000")
    a(f"v_lshrrev_b32 v250, 6, v0")
    a(f"s_lshl_b32 s94, s{wg_s}, 2")
    a(f"v_add_u32 v250, s94, v250")
    a(f"v_lshlrev_b32 v250, 6, v250")
    for i in range(n):
        a(f"v_mov_b32 v251, s{84+i}")
        a(f"buffer_store_dword v251, v250, s[96:99], 0 offen offset:{4*i}")

def signal(a, off_s, inws=False):
    if inws: srd(a, 12, P_WS, SZ_FLG, WS_FLG)
    else: srd(a, 12, P_DBG, 256)
    a("s_waitcnt vmcnt(0)")
    a("s_barrier")
    a("v_mov_b32 v14, 0")
    a("v_mov_b32 v15, 1")
    a("v_cmp_eq_u32 vcc, 0, v0")
    a("s_and_saveexec_b64 s[8:9], vcc")
    lab = a.newlabel("sig")
    a(f"s_cbranch_execz {lab}")
    a(f"buffer_atomic_add v15, v14, s[12:15], s{off_s} offen sc1")
    a.label(lab)
    a("s_mov_b64 exec, s[8:9]")

def rt_start(a):
    if not STAMPS: return
    a("s_memrealtime s[92:93]")
    a("s_waitcnt lgkmcnt(0)")
    a("s_mov_b32 s100, s92")
def rt_end(a, kern):
    if not STAMPS: return
    a("s_waitcnt vmcnt(0) lgkmcnt(0)")
    a("s_memrealtime s[92:93]")
    a("s_waitcnt lgkmcnt(0)")
    a(f"s_add_u32 s96, s{ptr(P_WS)}, {WS_STAMP + 0x30000 + kern*0x8000}")
    a(f"s_addc_u32 s97, s{ptr(P_WS)+1}, 0")
    a(f"s_mov_b32 s98, 0x8000")
    a(f"s_mov_b32 s99, 0x20000")
    a("s_mov_b64 exec, -1")
    a("v_lshrrev_b32 v250, 6, v0")
    a("s_lshl_b32 s94, s2, 2")
    a("v_add_u32 v250, s94, v250")
    a("v_lshlrev_b32 v250, 3, v250")
    a("v_mov_b32 v252, s100")
    a("v_mov_b32 v253, s92")
    a("buffer_store_dwordx2 v[252:253], v250, s[96:99], 0 offen")


def touch(a, q_s, xcd_s, half, sb=12):
    a(f"s_lshl_b32 s14, s{q_s}, 6")
    a("v_add_u32 v6, s14, v2")
    a("v_mul_u32_u24 v7, 13108, v6")
    a("v_lshrrev_b32 v7, 16, v7")
    a("v_mul_u32_u24 v8, 5, v7")
    a("v_sub_u32 v8, v6, v8")
    a("v_mul_u32_u24 v7, 1280, v7")
    a("v_lshl_add_u32 v7, v8, 7, v7")
    a(f"s_and_b32 s14, s{xcd_s}, 3")
    a("s_mul_i32 s14, s14, 655360")
    a(f"s_add_u32 s14, s14, {half*640}")
    a("v_add_u32 v7, s14, v7")
    a("v_subrev_u32 v6, 2560, v6")
    a("v_mul_u32_u24 v8, 9363, v6")
    a("v_lshrrev_b32 v8, 17, v8")
    a("v_mul_u32_u24 v9, 14, v8")
    a("v_sub_u32 v9, v6, v9")
    a("v_mul_u32_u24 v8, 3456, v8")
    a("v_lshl_add_u32 v8, v9, 7, v8")
    a(f"s_lshr_b32 s14, s{xcd_s}, 2")
    a("s_mul_i32 s14, s14, 1792")
    a(f"s_add_u32 s14, s14, {half*320*3456}")
    a("v_add_u32 v8, s14, v8")
    a(f"s_cmp_lt_u32 s{q_s}, 40")
    a("s_cselect_b64 vcc, -1, 0")
    a(f"s_cselect_b32 s{sb}, s{ptr(P_U)}, s{ptr(P_W1)}")
    a(f"s_cselect_b32 s{sb+1}, s{ptr(P_U)+1}, s{ptr(P_W1)+1}")
    a("v_cndmask_b32 v10, v8, v7, vcc")
    a(f"global_load_dword v20, v10, s[{sb}:{sb+1}]")

def touch_w(a, q_s, xcd_s, half):
    a(f"s_lshl_b32 s14, s{q_s}, 6")
    a("v_add_u32 v6, s14, v2")
    a("v_mul_u32_u24 v8, 9363, v6")
    a("v_lshrrev_b32 v8, 17, v8")
    a("v_mul_u32_u24 v9, 14, v8")
    a("v_sub_u32 v9, v6, v9")
    a("v_mul_u32_u24 v8, 3456, v8")
    a("v_lshl_add_u32 v8, v9, 7, v8")
    a(f"s_lshr_b32 s14, s{xcd_s}, 2")
    a("s_mul_i32 s14, s14, 1792")
    a(f"s_add_u32 s14, s14, {half*320*3456}")
    a("v_add_u32 v8, s14, v8")
    a(f"global_load_dword v20, v8, s[{ptr(P_W1)}:{ptr(P_W1)+1}]")

WT = os.environ.get("WT", " sc1")
```

```python
from common import *
import os

TSTR = 1296

def load_tile32(a, srd_in, rowbase_s):
    a("v_and_b32 v2, 63, v0")
    a("v_lshrrev_b32 v3, 6, v0")
    a("v_lshrrev_b32 v4, 3, v0")
    a("v_and_b32 v5, 7, v0")
    a("v_lshlrev_b32 v5, 4, v5")
    a(f"v_add_u32 v6, s{rowbase_s}, v4")
    a("v_mul_u32_u24 v6, 1280, v6")
    a("v_add_u32 v6, v6, v5")
    for j in range(10):
        a(f"buffer_load_dwordx4 v[{16+4*j}:{19+4*j}], v6, s[{srd_in}:{srd_in+3}], 0 offen offset:{128*j}")
    a(f"v_mul_u32_u24 v1, {TSTR}, v4")
    a("v_add_u32 v1, v1, v5")

def role_lnt(a, wg_s, remap=False):
    if remap:
        a(f"s_and_b32 s4, s{wg_s}, 3")
        a("s_lshl_b32 s4, s4, 4")
        a(f"s_lshr_b32 s5, s{wg_s}, 3")
        a("s_lshl_b32 s5, s5, 1")
        a("s_add_u32 s4, s4, s5")
        a(f"s_bfe_u32 s5, s{wg_s}, 0x10002")
        a(f"s_add_u32 s{wg_s}, s4, s5")
    srd(a, 48, P_U, 2621440)
    srd(a, 52, P_WS, SZ_XNP, WS_XNP)
    a(f"s_lshl_b32 s4, s{wg_s}, 5")
    load_tile32(a, 48, 4)
    a("s_mov_b32 s5, 0x3f803f80")
    a("v_mov_b32 v7, 0")
    a("v_mov_b32 v8, 0")
    for j in range(10):
        a(f"s_waitcnt vmcnt({9-j})")
        for k in range(4):
            acc = 7 + (k & 1)
            a(f"v_dot2_f32_bf16 v{acc}, v{16+4*j+k}, s5, v{acc}")
    a("v_add_f32 v7, v7, v8")
    def red8(r):
        a(f"v_add_f32_dpp v{r}, v{r}, v{r} quad_perm:[1,0,3,2] row_mask:0xf bank_mask:0xf")
        a(f"v_add_f32_dpp v{r}, v{r}, v{r} quad_perm:[2,3,0,1] row_mask:0xf bank_mask:0xf")
        a(f"v_add_f32_dpp v{r}, v{r}, v{r} row_half_mirror row_mask:0xf bank_mask:0xf")
    red8(7)
    a("s_mov_b32 s6, 0x3acccccd")
    a("v_mul_f32 v7, s6, v7")
    a("v_mov_b32 v8, 0")
    a("v_mov_b32 v9, 0")
    for i in range(40):
        a(f"v_lshlrev_b32 v{64+2*i}, 16, v{16+i}")
        a(f"v_and_b32 v{65+2*i}, 0xffff0000, v{16+i}")
        a(f"v_sub_f32 v10, v{64+2*i}, v7")
        a(f"v_sub_f32 v11, v{65+2*i}, v7")
        a(f"v_fmac_f32 v8, v10, v10")
        a(f"v_fmac_f32 v9, v11, v11")
    a("v_add_f32 v8, v8, v9")
    red8(8)
    a("v_mul_f32 v8, s6, v8")
    a("v_cvt_pk_bf16_f32 v9, v7, v8")
    a("v_lshlrev_b32 v7, 16, v9")
    a("v_and_b32 v8, 0xffff0000, v9")
    a("v_add_f32 v8, 0x3727c5ac, v8")
    a("v_cvt_pk_bf16_f32 v8, v8, v8")
    a("v_lshlrev_b32 v8, 16, v8")
    a("v_sqrt_f32 v8, v8")
    a("v_cvt_pk_bf16_f32 v8, v8, v8")
    a("v_lshlrev_b32 v8, 16, v8")
    a("v_rcp_f32 v9, v8")
    for i in range(40):
        a(f"v_sub_f32 v10, v{64+2*i}, v7")
        a(f"v_sub_f32 v11, v{65+2*i}, v7")
        a(f"v_cvt_pk_bf16_f32 v10, v10, v11")
        a(f"v_and_b32 v11, 0xffff0000, v10")
        a(f"v_lshlrev_b32 v10, 16, v10")
        a(f"v_mul_f32 v12, v10, v9")
        a(f"v_mul_f32 v13, v11, v9")
        a(f"v_fma_f32 v10, -v12, v8, v10")
        a(f"v_fma_f32 v11, -v13, v8, v11")
        a(f"v_fmac_f32 v12, v10, v9")
        a(f"v_fmac_f32 v13, v11, v9")
        a(f"v_cvt_pk_bf16_f32 v{16+i}, v12, v13")
        if i % 4 == 3:
            j = i // 4
            a(f"ds_write_b128 v1, v[{16+4*j}:{19+4*j}] offset:{128*j}")
    a("s_waitcnt lgkmcnt(0)")
    a("s_barrier")
    a("v_lshrrev_b32 v4, 4, v2")
    a("v_bfe_u32 v5, v2, 2, 2")
    a("v_lshlrev_b32 v5, 2, v5")
    a("v_add_u32 v5, v5, v4")
    a(f"v_mul_u32_u24 v5, {TSTR}, v5")
    a("v_and_b32 v6, 3, v2")
    a("v_lshlrev_b32 v6, 3, v6")
    a("v_add_u32 v5, v5, v6")
    a("v_lshlrev_b32 v6, 5, v3")
    a("v_add_u32 v5, v5, v6")
    a("v_and_b32 v6, 15, v2")
    a("v_lshlrev_b32 v7, 4, v3")
    a("v_add_u32 v6, v6, v7")
    a("v_lshlrev_b32 v6, 6, v6")
    a("v_lshlrev_b32 v7, 4, v4")
    a("v_add_u32 v6, v6, v7")
    a(f"s_mul_i32 s4, s{wg_s}, 40960")
    for k in range(10):
        a(f"ds_read_b64_tr_b16 v[{16+4*k}:{17+4*k}], v5 offset:{128*k}")
        a(f"ds_read_b64_tr_b16 v[{18+4*k}:{19+4*k}], v5 offset:{128*k+16*TSTR}")
    for k in range(10):
        a(f"s_waitcnt lgkmcnt({min(15, 2*(9-k))})")
        a(f"buffer_store_dwordx4 v[{16+4*k}:{19+4*k}], v6, s[52:55], s4 offen{WT}")
        if k < 9: a("s_add_u32 s4, s4, 4096")
    a("s_endpgm")

def role_w2t(a, wg_s, end=True):
    srd(a, 48, P_W2, 2211840)
    srd(a, 52, P_WS, SZ_W2T, WS_W2T)
    a(f"s_lshl_b32 s4, s{wg_s}, 5")
    load_tile32(a, 48, 4)
    for j in range(10):
        a(f"s_waitcnt vmcnt({9-j})")
        a(f"ds_write_b128 v1, v[{16+4*j}:{19+4*j}] offset:{128*j}")
    a("s_waitcnt lgkmcnt(0)")
    a("s_barrier")
    a("v_lshrrev_b32 v4, 4, v2")
    a("v_bfe_u32 v5, v2, 2, 2")
    a("v_lshlrev_b32 v4, 3, v4")
    a("v_add_u32 v5, v5, v4")
    a(f"v_mul_u32_u24 v5, {TSTR}, v5")
    a("v_and_b32 v6, 3, v2")
    a("v_lshlrev_b32 v6, 3, v6")
    a("v_add_u32 v5, v5, v6")
    a("v_lshlrev_b32 v6, 5, v3")
    a("v_add_u32 v5, v5, v6")
    a("v_mul_u32_u24 v6, 55296, v3")
    a("v_lshlrev_b32 v7, 4, v2")
    a("v_add_u32 v6, v6, v7")
    a(f"s_lshl_b32 s4, s{wg_s}, 10")
    for k in range(10):
        a(f"ds_read_b64_tr_b16 v[{16+4*k}:{17+4*k}], v5 offset:{128*k}")
        a(f"ds_read_b64_tr_b16 v[{18+4*k}:{19+4*k}], v5 offset:{128*k+4*TSTR}")
    for k in range(10):
        a(f"s_waitcnt lgkmcnt({min(15, 2*(9-k))})")
        a(f"buffer_store_dwordx4 v[{16+4*k}:{19+4*k}], v6, s[52:55], s4 offen{WT}")
        if k < 9: a(f"s_add_u32 s4, s4, {4*54*1024}")
    if end: a("s_endpgm")

def role_colsum(a, wg_s, sc1=False, flag=None):
    if sc1:
        a(f"s_lshr_b32 s4, s{wg_s}, 3")
        a("s_lshl_b32 s4, s4, 2")
        a(f"s_and_b32 s5, s{wg_s}, 3")
        a("s_add_u32 s4, s4, s5")
        a(f"s_bfe_u32 s5, s{wg_s}, 0x10002")
        a("s_mul_i32 s5, s5, 14")
        a(f"s_add_u32 s{wg_s}, s4, s5")
        lab = a.newlabel("cs_go")
        a("s_cmp_lt_u32 s4, 14")
        a("s_cselect_b32 s4, 1, 0")
        a(f"s_cmp_lt_u32 s{wg_s}, 27")
        a("s_cselect_b32 s4, s4, 0")
        a("s_cmp_lg_u32 s4, 0")
        a(f"s_cbranch_scc1 {lab}")
        a("s_endpgm")
        a.label(lab)
    srd(a, 48, P_W1, 2211840)
    srd(a, 52, P_WS, SZ_CS, WS_CS)
    a("v_lshrrev_b32 v4, 3, v0")
    a("v_and_b32 v5, 7, v0")
    a("v_mul_u32_u24 v6, 3456, v4")
    a("v_lshl_add_u32 v6, v5, 4, v6")
    a(f"s_lshl_b32 s4, s{wg_s}, 7")
    for j in range(20):
        a(f"buffer_load_dwordx4 v[{16+4*j}:{19+4*j}], v6, s[48:51], s4 offen")
        if j < 19: a("s_add_u32 s4, s4, 110592")
    for r in range(8, 16): a(f"v_mov_b32 v{r}, 0")
    for j in range(20):
        a(f"s_waitcnt vmcnt({19-j})")
        for k in range(4):
            a(f"v_lshlrev_b32 v100, 16, v{16+4*j+k}")
            a(f"v_and_b32 v101, 0xffff0000, v{16+4*j+k}")
            a(f"v_pk_add_f32 v[{8+2*k}:{9+2*k}], v[{8+2*k}:{9+2*k}], v[100:101]")
    a("v_mul_u32_u24 v6, 272, v4")
    a("v_lshl_add_u32 v6, v5, 5, v6")
    a("ds_write_b128 v6, v[8:11]")
    a("ds_write_b128 v6, v[12:15] offset:16")
    a("s_waitcnt lgkmcnt(0)")
    a("s_barrier")
    a("v_and_b32 v2, 63, v0")
    a("v_lshrrev_b32 v3, 6, v0")
    a("v_mul_u32_u24 v6, 2176, v3")
    a("v_lshl_add_u32 v6, v2, 2, v6")
    for k in range(8): a(f"ds_read_b32 v{16+k}, v6 offset:{272*k}")
    a("s_waitcnt lgkmcnt(0)")
    for k in range(1, 8): a(f"v_add_f32 v16, v16, v{16+k}")
    a("s_barrier")
    a("v_lshlrev_b32 v6, 2, v0")
    a("ds_write_b32 v6, v16")
    a("s_waitcnt lgkmcnt(0)")
    a("s_barrier")
    a("v_lshlrev_b32 v6, 2, v2")
    for k in range(4): a(f"ds_read_b32 v{16+k}, v6 offset:{256*k}")
    a("s_waitcnt lgkmcnt(0)")
    a("v_add_f32 v16, v16, v17")
    a("v_add_f32 v18, v18, v19")
    a("v_add_f32 v16, v16, v18")
    a("v_cvt_pk_bf16_f32 v17, v16, v16")
    a("v_lshlrev_b32 v17, 16, v17")
    a("v_sub_f32 v17, v16, v17")
    a("v_cvt_pk_bf16_f32 v16, v16, v17")
    a(f"s_lshl_b32 s4, s{wg_s}, 8")
    a("v_cmp_gt_u32 vcc, 64, v0")
    a("s_and_saveexec_b64 s[8:9], vcc")
    a("buffer_store_dword v16, v6, s[52:55], s4 offen" + (" sc1" if sc1 else ""))
    a("s_mov_b64 exec, s[8:9]")
    if sc1:
        a(f"s_lshr_b32 s7, s{wg_s}, 1")
        a("s_lshl_b32 s7, s7, 2")
        a("s_add_u32 s7, s7, 64")
        signal(a, 7)
    a("s_endpgm")

def role_pf1(a, wg_s):
    a("v_and_b32 v2, 63, v0")
    a("v_lshrrev_b32 v3, 6, v0")
    a("v_readfirstlane_b32 s8, v3")
    if os.environ.get("XTEST"):
        a("s_getreg_b32 s4, hwreg(HW_REG_XCC_ID)")
        a("s_and_b32 s4, s4, 7")
        a(f"s_and_b32 s5, s{wg_s}, 7")
        lx = a.newlabel("xt"); ly = a.newlabel("xl")
        a("s_cmp_eq_u32 s4, s5")
        a(f"s_cbranch_scc1 {lx}")
        a("s_mov_b32 s5, 0")
        a.label(ly)
        a("s_sleep 100")
        a("s_add_u32 s5, s5, 1")
        a("s_cmp_lt_u32 s5, 10")
        a(f"s_cbranch_scc1 {ly}")
        a.label(lx)
    a(f"s_and_b32 s4, s{wg_s}, 7")
    a(f"s_lshr_b32 s5, s{wg_s}, 3")
    a("s_lshl_b32 s11, s5, 2")
    a("s_add_u32 s11, s11, s8")
    if not os.environ.get("NOCODEPF"):
        pc = a.newlabel("pc")
        a("s_getpc_b64 s[12:13]")
        a.label(pc)
        a(f"s_sub_u32 s12, s12, {pc}-code_start")
        a("s_subb_u32 s13, s13, 0")
        a("v_lshlrev_b32 v6, 7, v2")
        a("s_lshl_b32 s14, s11, 13")
        a("v_add_u32 v6, s14, v6")
        a("v_min_u32 v6, code_end-code_start-4, v6")
        a("global_load_dword v21, v6, s[12:13]")
    lp = a.newlabel("pf1")
    a.label(lp)
    touch(a, 11, 4, 1)
    a("s_add_u32 s11, s11, 16")
    a("s_cmp_lt_u32 s11, 110")
    a(f"s_cbranch_scc1 {lp}")
    end = a.newlabel("pf1e")
    a(f"s_cmp_lg_u32 s{wg_s}, 0")
    a(f"s_cbranch_scc1 {end}")
    srd(a, 48, P_WS, SZ_FLG, WS_FLG)
    a("v_lshlrev_b32 v4, 8, v0")
    a("v_mov_b32 v5, 0")
    a("buffer_store_dword v5, v4, s[48:51], 0 offen")
    a.label(end)
    lp2 = a.newlabel("pfw")
    a.label(lp2)
    role_w2t(a, wg_s, end=False)
    a(f"s_add_u32 s{wg_s}, s{wg_s}, 32")
    a(f"s_cmp_lt_u32 s{wg_s}, 54")
    a("s_waitcnt lgkmcnt(0)")
    a("s_barrier")
    a(f"s_cbranch_scc1 {lp2}")
    a("s_endpgm")
```

```python
from common import *

CV_KL = 0
CV_ST = 4224
CV_X = 8320
CV_LDS = 12928

def role_conv(a, wg_s, sc1=False, flag=None):
    stamp(a, 0)
    a("s_setprio 3")
    srd(a, 48, P_WS, SZ_XNP, WS_XNP)
    srd(a, 52, P_WS, SZ_K, WS_K)
    srd(a, 56, P_WS, SZ_ST, WS_ST)
    srd(a, 60, P_DSK, 1280)
    a("v_and_b32 v2, 63, v0")
    a("v_lshrrev_b32 v3, 6, v0")
    a("v_readfirstlane_b32 s4, v3")
    a(f"s_lshl_b32 s5, s{wg_s}, 2")
    a("s_add_u32 s5, s5, s4")
    a(f"s_mul_i32 s6, s4, {CV_LDS}")
    a("s_lshl_b32 s7, s5, 12")
    a("s_lshl_b32 s8, s5, 6")
    a("s_lshl_b32 s9, s5, 1")
    a("v_lshlrev_b32 v4, 4, v2")
    KT = 16
    for q in range(4):
        a(f"buffer_load_dwordx4 v[{KT+4*q}:{KT+4*q+3}], v4, s[52:55], s7 offen offset:{1024*q}")
    a("v_mov_b32 v5, 0")
    a("buffer_load_ushort v6, v5, s[60:63], s9 offen")
    X = 128
    a("v_lshrrev_b32 v7, 4, v2")
    a("v_and_b32 v8, 15, v2")
    a("v_mul_u32_u24 v9, 40960, v7")
    a("v_lshl_add_u32 v9, v8, 4, v9")
    a("s_mul_i32 s10, s4, 655360")
    a(f"s_lshl_b32 s11, s{wg_s}, 8")
    a("s_add_u32 s10, s10, s11")
    for q in range(4):
        a(f"buffer_load_dwordx4 v[{X+4*q}:{X+4*q+3}], v9, s[48:51], s10 offen")
        if q < 3: a("s_add_u32 s10, s10, 163840")
    a("v_lshrrev_b32 v9, 2, v8")
    a(f"v_mul_u32_u24 v9, {CV_LDS}, v9")
    a("v_lshl_add_u32 v9, v7, 6, v9")
    a("v_and_b32 v8, 3, v8")
    a("v_lshl_add_u32 v9, v8, 4, v9")
    a("s_lshl_b32 s10, s4, 10")
    a("v_add_u32 v9, s10, v9")
    a("v_and_b32 v7, 31, v2")
    a("v_lshrrev_b32 v8, 2, v7")
    a("v_lshrrev_b32 v10, 5, v2")
    a("v_add_u32 v8, v8, v10")
    a("v_and_b32 v7, 3, v2")
    a("v_lshlrev_b32 v8, 6, v8")
    a("v_lshl_add_u32 v8, v7, 4, v8")
    a("v_add_u32 v10, s6, v8")
    a("v_lshrrev_b32 v11, 5, v2")
    a("v_lshlrev_b32 v11, 6, v11")
    a("v_lshl_add_u32 v11, v7, 4, v11")
    a("v_bfe_u32 v12, v2, 2, 3")
    a("v_lshl_add_u32 v11, v12, 1, v11")
    a("v_add_u32 v11, s6, v11")
    a("v_add_u32 v12, s6, v4")
    a("v_mov_b32 v32, 0"); a("v_mov_b32 v33, 0"); a("v_mov_b32 v34, 0"); a("v_mov_b32 v35, 0")
    a("ds_write_b128 v12, v[32:35]")
    a("v_cmp_gt_u32 vcc, 28, v2")
    a("s_and_saveexec_b64 s[12:13], vcc")
    a(f"ds_write_b128 v12, v[32:35] offset:{CV_X}")
    a("s_mov_b64 exec, s[12:13]")
    a("s_waitcnt vmcnt(5)")
    for q in range(4):
        a(f"ds_write_b128 v12, v[{KT+4*q}:{KT+4*q+3}] offset:{64+1024*q}")
    for q in range(4):
        a(f"s_waitcnt vmcnt({3-q})")
        a(f"ds_write_b128 v9, v[{X+4*q}:{X+4*q+3}] offset:{CV_X+448+256*q}")
    a("s_waitcnt lgkmcnt(0)")
    stamp(a, 1)
    a("s_barrier")
    for e in range(-3, 29):
        a(f"ds_read_b128 v[{X+4*(e+3)}:{X+4*(e+3)+3}], v10 offset:{CV_X+384+128*e}")
    a("s_waitcnt lgkmcnt(0)")
    a("v_bfe_u32 v13, v2, 4, 1")
    a("v_lshlrev_b32 v13, 4, v13")
    a("v_and_b32 v14, 3, v2")
    a("v_lshl_add_u32 v13, v14, 2, v13")
    a("v_bfe_u32 v14, v2, 2, 2")
    a("v_lshlrev_b32 v14, 2, v14")
    a("v_sub_u32 v13, v13, v14")
    a("v_lshrrev_b32 v14, 5, v2")
    a("v_lshlrev_b32 v14, 5, v14")
    a("v_sub_u32 v13, v13, v14")
    a("v_add_u32 v13, 48, v13")
    a("v_lshl_add_u32 v13, v13, 1, s6")
    a("v_lshl_add_u32 v14, v2, 1, s6")
    ACC = 64
    XN = 36
    C3, C2, C1 = 52, 53, 54
    T0, T1 = 56, 57
    a(f"v_mov_b32 v{C3}, 0"); a(f"v_mov_b32 v{C2}, 0"); a(f"v_mov_b32 v{C1}, 0")
    def kread(kap, buf):
        r = KT + 4 * buf
        a(f"ds_read_b64_tr_b16 v[{r}:{r+1}], v13 offset:{128*kap+32}")
        a(f"ds_read_b64_tr_b16 v[{r+2}:{r+3}], v13 offset:{128*kap}")
    for p in range(2):
        us = list(range(4 * p, 4 * p + 4))
        nk = 4 * us[-1] + 4
        for r in range(ACC, ACC + 64): a(f"v_mov_b32 v{r}, 0")
        kread(0, 0); kread(1, 1); kread(2, 2)
        waited = -100
        for kap in range(nk):
            if kap + 3 < nk: kread(kap + 3, (kap + 3) % 4)
            rem = min(nk - 1, kap + 3) - kap
            a(f"s_waitcnt lgkmcnt({2*rem})")
            kb = KT + 4 * (kap % 4)
            for u in us:
                e = 4 * u - kap
                if e < -3: continue
                c = ACC + 16 * (u - us[0])
                x = X + 4 * (e + 3)
                a(f"v_mfma_f32_32x32x16_bf16 v[{c}:{c+15}], v[{x}:{x+3}], v[{kb}:{kb+3}], v[{c}:{c+15}]")
        stamp(a, 2 + 2 * p)
        if p == 0:
            a("v_lshlrev_b32 v6, 16, v6")
        for Q in range(16):
            a(f"ds_read_u16 v{XN+Q}, v11 offset:{CV_X+448+128*(16*p+Q)}")
        z = lambda Q, r: ACC + 4 * Q + r
        def level(prevreg, cur, zr, carry):
            new = []
            for Q in range(16):
                pv = carry if Q == 0 else cur[Q - 1]
                a(f"v_add_f32_dpp v{pv}, v{pv}, v{z(Q, zr)} wave_ror:1 row_mask:0xf bank_mask:0xf")
                new.append(pv)
            for Q in range(16):
                pass
            return new
        def level2(cur, zr, carry):
            new = []
            for Q in range(16):
                pv = carry if Q == 0 else cur[Q - 1]
                a(f"v_add_f32_dpp v{pv}, v{pv}, v{z(Q, zr)} wave_ror:1 row_mask:0xf bank_mask:0xf")
                a(f"v_add_f32_dpp v{pv}, v{cur[Q]}, v{z(Q, zr)} wave_shr:1 row_mask:0xf bank_mask:0xf")
                new.append(pv)
            return new
        P3 = [z(Q, 3) for Q in range(16)]
        P2 = level2(P3, 2, C3)
        P1 = level2(P2, 1, C2)
        Y = level2(P1, 0, C1)
        a("s_waitcnt lgkmcnt(0)")
        for Q in range(16):
            a(f"v_lshlrev_b32 v{XN+Q}, 16, v{XN+Q}")
            a(f"v_mul_f32 v{XN+Q}, v6, v{XN+Q}")
            a(f"v_cvt_pk_bf16_f32 v{T0}, v{Y[Q]}, v{XN+Q}")
            a(f"v_lshlrev_b32 v{T1}, 16, v{T0}")
            a(f"v_and_b32 v{T0}, 0xffff0000, v{T0}")
            a(f"v_add_f32 v{T0}, v{T0}, v{T1}")
            a(f"v_cvt_pk_bf16_f32 v{XN+Q}, v{T0}, v{T0}")
            a(f"ds_write_b16 v14, v{XN+Q} offset:{CV_ST + 128*(16*p+Q)}")
        stamp(a, 3 + 2 * p)
        if p == 0:
            a(f"v_mov_b32 v{C3}, v{P3[15]}")
            a(f"v_mov_b32 v{C2}, v{P2[15]}")
            a(f"v_mov_b32 v{C1}, v{P1[15]}")
    for q in range(4):
        a(f"ds_read_b128 v[{KT+4*q}:{KT+4*q+3}], v12 offset:{CV_ST+1024*q}")
    for q in range(4):
        a(f"s_waitcnt lgkmcnt({3-q})")
        a(f"buffer_store_dwordx4 v[{KT+4*q}:{KT+4*q+3}], v4, s[56:59], s7 offen offset:{1024*q}" + (" sc1" if sc1 else ""))
    if sc1:
        a(f"s_mul_i32 s7, s{wg_s}, 3277")
        a("s_lshr_b32 s7, s7, 16")
        a("s_lshl_b32 s7, s7, 8")
        signal(a, 7, inws=True)
    a("s_waitcnt vmcnt(0)")
    stamp(a, 6)
    stamp_flush(a, 7, wg_s, base=0x20000)
    a("s_endpgm")
```

```python
from common import *
import os
EXP = os.environ.get('G1EXP', '')

G1_SLOT = 16384
G1_NSLOT = 4
G1_STAT = G1_SLOT * G1_NSLOT
G1_LDS = G1_STAT

def role_gemm1(a, wg_s):
    stamp(a, 0)
    srd(a, 48, P_U, 2621440)
    srd(a, 52, P_W1, 2211840)
    a(f"s_and_b32 s4, s{wg_s}, 7")
    a(f"s_lshr_b32 s5, s{wg_s}, 3")
    a("s_and_b32 s6, s4, 3")
    a("s_lshl_b32 s6, s6, 2")
    a("s_and_b32 s7, s5, 3")
    a("s_add_u32 s6, s6, s7")
    a("s_lshr_b32 s7, s4, 2")
    a("s_mul_i32 s7, s7, 7")
    a("s_lshr_b32 s8, s5, 2")
    a("s_add_u32 s7, s7, s8")
    a("v_and_b32 v2, 63, v0")
    a("v_lshrrev_b32 v3, 6, v0")
    a("v_readfirstlane_b32 s8, v3")
    a("s_lshl_b32 s11, s5, 2")
    a("s_add_u32 s11, s11, s8")
    lab = a.newlabel("g1t")
    a("s_cmp_ge_u32 s11, 110")
    a(f"s_cbranch_scc1 {lab}")
    touch(a, 11, 4, 0)
    a.label(lab)
    a("s_lshl_b32 s11, s6, 7")
    a("s_lshl_b32 s12, s8, 5")
    a("s_add_u32 s11, s11, s12")
    a("s_mul_i32 s11, s11, 1280")
    a("v_lshrrev_b32 v4, 2, v2")
    a("v_mul_u32_u24 v4, 1280, v4")
    a("v_bfe_u32 v5, v2, 4, 2")
    a("v_and_b32 v6, 3, v2")
    a("v_xor_b32 v6, v6, v5")
    a("v_lshl_add_u32 v4, v6, 4, v4")
    a("v_mul_u32_u24 v7, 3456, v5")
    a("v_and_b32 v6, 15, v2")
    a("v_lshlrev_b32 v8, 2, v5")
    a("v_xor_b32 v6, v6, v8")
    a("v_lshl_add_u32 v5, v6, 4, v7")
    a("s_mul_i32 s12, s8, 27648")
    a("s_lshl_b32 s13, s7, 8")
    a("s_add_u32 s12, s12, s13")
    a("s_lshl_b32 s13, s8, 11")
    def dma_parts(slot):
        base = slot * G1_SLOT
        return [
            [f"s_add_u32 m0, s13, {base}", f"s_add_u32 s14, s11, 20480",
             f"buffer_load_dwordx4 v4, s[48:51], s11 offen lds"],
            [f"s_add_u32 m0, s13, {base+1024}", f"s_add_u32 s11, s11, 64",
             f"buffer_load_dwordx4 v4, s[48:51], s14 offen lds"],
            [f"s_add_u32 m0, s13, {base+8192}", f"s_add_u32 s14, s12, 13824",
             f"buffer_load_dwordx4 v5, s[52:55], s12 offen lds"],
            [f"s_add_u32 m0, s13, {base+8192+1024}", f"s_add_u32 s12, s12, 110592",
             f"buffer_load_dwordx4 v5, s[52:55], s14 offen lds"],
        ]
    srd(a, 56, P_WS, SZ_H, WS_H)
    srd(a, 60, P_B1, 3456)
    a("s_and_b32 s9, s8, 1")
    a("s_lshr_b32 s10, s8, 1")
    a("s_lshl_b32 s14, s9, 1")
    a("s_add_u32 s67, s14, s10")
    a("s_xor_b32 s68, s67, 1")
    a("v_and_b32 v6, 31, v2")
    a("v_lshrrev_b32 v7, 5, v2")
    a("v_bfe_u32 v8, v2, 2, 2")
    a("v_xor_b32 v8, v8, v7")
    a("v_lshlrev_b32 v9, 6, v6")
    a("v_lshl_add_u32 v9, v8, 4, v9")
    a("s_lshl_b32 s14, s10, 1")
    a("s_add_u32 s15, s14, s9")
    a("s_xor_b32 s64, s15, 1")
    a("s_lshl_b32 s65, s15, 11")
    a("s_lshl_b32 s66, s64, 11")
    a("v_add_u32 v10, s65, v9")
    a("v_xor_b32 v11, 32, v10")
    a("v_add_u32 v12, s66, v9")
    a("v_xor_b32 v13, 32, v12")
    a("v_bfe_u32 v14, v2, 4, 1")
    a("v_bfe_u32 v15, v2, 2, 2")
    a("v_and_b32 v16, 3, v2")
    a("v_lshlrev_b32 v17, 3, v7")
    a("v_add_u32 v17, v17, v15")
    a("v_lshlrev_b32 v17, 8, v17")
    a("v_lshl_add_u32 v17, v14, 5, v17")
    a("v_lshl_add_u32 v17, v16, 3, v17")
    a("v_add_u32 v17, 8192, v17")
    a("v_xor_b32 v18, s67, v15")
    a("v_lshl_add_u32 v14, v18, 6, v17")
    a("v_xor_b32 v18, s68, v15")
    a("v_lshl_add_u32 v15, v18, 6, v17")
    a("s_lshl_b32 s14, s7, 7")
    a("s_lshl_b32 s69, s67, 5")
    a("s_add_u32 s69, s69, s14")
    a("s_lshl_b32 s70, s68, 5")
    a("s_add_u32 s70, s70, s14")
    a("v_add_u32 v16, s69, v6")
    a("v_lshlrev_b32 v16, 1, v16")
    a("v_add_u32 v17, s70, v6")
    a("v_lshlrev_b32 v17, 1, v17")
    ACC = 64
    SA = 32
    SB = 48
    B1R = 232
    ONE = 236
    QX = 128
    SX = 136
    SW = 140
    UT = 144
    for r in range(2): a(f"v_mov_b32 v{ONE+r}, 0x3f803f80")
    for r in range(QX, QX + 16): a(f"v_mov_b32 v{r}, 0")
    for r in range(SB, SB + 16): a(f"v_mov_b32 v{r}, 0")
    for r in range(ACC, ACC + 64): a(f"v_mov_b32 v{r}, 0")
    a("s_waitcnt vmcnt(0)")
    a("s_barrier")
    for sl in range(3):
        for p in dma_parts(sl):
            for x in p: a(x)
    def reads(slot, h, S):
        base = slot * G1_SLOT
        return [[f"ds_read_b64_tr_b16 v[{S}:{S+1}], v14 offset:{base+4096*h}",
                 f"ds_read_b64_tr_b16 v[{S+2}:{S+3}], v14 offset:{base+4096*h+1024}",
                 f"ds_read_b128 v[{S+8}:{S+11}], v{10+h} offset:{base}"],
                [f"ds_read_b128 v[{S+12}:{S+15}], v{12+h} offset:{base}",
                 f"ds_read_b64_tr_b16 v[{S+4}:{S+5}], v15 offset:{base+4096*h}",
                 f"ds_read_b64_tr_b16 v[{S+6}:{S+7}], v15 offset:{base+4096*h+1024}"]]
    def mfmas(S, fill):
        n = 0
        for fi in range(2):
            for ti in range(2):
                c = ACC + 16 * (2 * fi + ti)
                a(f"v_mfma_f32_32x32x16_bf16 v[{c}:{c+15}], v[{S+4*fi}:{S+4*fi+3}], v[{S+8+4*ti}:{S+8+4*ti+3}], v[{c}:{c+15}]")
                if n < len(fill):
                    for x in fill[n]: a(x)
                if 'nostat' not in EXP:
                    h = n & 1
                    xa = f"v[{S+8+2*h}:{S+9+2*h}]"; wa = f"v[{S+2*h}:{S+1+2*h}]"
                    if n < 2:
                        a(f"v_mfma_f32_4x4x4_16b_bf16 v[{SX}:{SX+3}], v[{ONE}:{ONE+1}], {xa}, v[{SX}:{SX+3}]")
                        if 'valusq' not in EXP:
                            a(f"v_mfma_f32_4x4x4_16b_bf16 v[{QX}:{QX+3}], {xa}, {xa}, v[{QX}:{QX+3}]")
                    else:
                        a(f"v_mfma_f32_4x4x4_16b_bf16 v[{SW}:{SW+3}], v[{ONE}:{ONE+1}], {wa}, v[{SW}:{SW+3}]")
                    if 'valusq' in EXP:
                        u = UT + 2 * n
                        a(f"v_lshlrev_b32 v{u}, 16, v{S+8+n}")
                        a(f"v_and_b32 v{u+1}, 0xffff0000, v{S+8+n}")
                        a(f"v_fmac_f32 v{QX+(n&1)*2}, v{u}, v{u}")
                        a(f"v_fmac_f32 v{QX+(n&1)*2+1}, v{u+1}, v{u+1}")
                n += 1
    def stage(u, do_dma, vm, extra=None):
        a(f"s_waitcnt vmcnt({vm}) lgkmcnt(0)")
        a("s_barrier")
        d = dma_parts((u + 3) % 4) if do_dma else [[], [], [], []]
        if extra: d = extra
        mfmas(SB, reads(u, 0, SA) + d[0:2])
        a("s_waitcnt lgkmcnt(0)")
        mfmas(SA, reads(u, 1, SB) + d[2:4])
    stamp(a, 1)
    a("s_mov_b32 s72, 0")
    lp = a.newlabel("g1loop")
    a.label(lp)
    for u in range(4): stage(u, True, 8)
    a("s_add_u32 s72, s72, 1")
    a("s_cmp_lt_u32 s72, 4")
    a(f"s_cbranch_scc1 {lp}")
    stage(0, True, 8)
    b1l = [[f"buffer_load_ushort v{B1R}, v16, s[60:63], 0 offen", f"buffer_load_ushort v{B1R+1}, v17, s[60:63], 0 offen"], [], [], []]
    stage(1, False, 8, b1l)
    stage(2, False, 4 + 2)
    stage(3, False, 2)
    a("s_waitcnt lgkmcnt(0)")
    mfmas(SB, [])
    stamp(a, 2)
    if 'valusq' in EXP:
        a(f"v_add_f32 v{QX}, v{QX}, v{QX+1}")
        a(f"v_add_f32 v{QX+2}, v{QX+2}, v{QX+3}")
        a(f"v_add_f32 v{QX}, v{QX}, v{QX+2}")
    else:
        a("v_and_b32 v18, 3, v2")
        for k in range(1, 4):
            a(f"v_cmp_eq_u32 vcc, {k}, v18")
            a(f"v_cndmask_b32 v{QX}, v{QX}, v{QX+k}, vcc")
    a("v_lshlrev_b32 v8, 2, v2")
    a("s_lshl_b32 s14, s15, 8")
    a("v_add_u32 v9, s14, v8")
    a(f"ds_write_b32 v9, v{SX}")
    a(f"ds_write_b32 v9, v{QX} offset:1024")
    a("s_lshl_b32 s14, s67, 8")
    a("v_add_u32 v9, s14, v8")
    a(f"ds_write_b32 v9, v{SW} offset:2048")
    a("s_waitcnt lgkmcnt(0)")
    a("s_barrier")
    a("v_lshlrev_b32 v8, 2, v6")
    R = 32
    for i, (stb, sfb) in enumerate(((15, 67), (64, 68))):
        a(f"s_lshl_b32 s14, s{stb}, 8")
        a("v_add_u32 v9, s14, v8")
        a(f"ds_read2_b32 v[{R+8*i}:{R+8*i+1}], v9 offset0:0 offset1:32")
        a(f"v_add_u32 v9, 1024, v9")
        a(f"ds_read2_b32 v[{R+8*i+2}:{R+8*i+3}], v9 offset0:0 offset1:32")
        a(f"s_lshl_b32 s14, s{sfb}, 8")
        a("v_add_u32 v9, s14, v8")
        a(f"v_add_u32 v9, 2048, v9")
        a(f"ds_read2_b32 v[{R+8*i+4}:{R+8*i+5}], v9 offset0:0 offset1:32")
    a("s_mov_b32 s14, 0x3acccccd")
    a("v_cmp_gt_u32 vcc, 32, v2")
    a("s_mov_b64 s[74:75], vcc")
    a("s_waitcnt vmcnt(0) lgkmcnt(0)")
    XF = 128; WF = 136; RS = 144
    for i in range(2):
        b = R + 8 * i
        a(f"v_add_f32 v{b}, v{b}, v{b+1}")
        a(f"v_add_f32 v{b+2}, v{b+2}, v{b+3}")
        a(f"v_add_f32 v{b+4}, v{b+4}, v{b+5}")
        a(f"v_mul_f32 v{b}, s14, v{b}")
        a(f"v_mul_f32 v{b+2}, s14, v{b+2}")
        a(f"v_fma_f32 v{b+2}, -v{b}, v{b}, v{b+2}")
        a(f"v_max_f32 v{b+2}, 0, v{b+2}")
        a(f"v_cvt_pk_bf16_f32 v{b+1}, v{b+2}, v{b+2}")
        a(f"v_lshlrev_b32 v{b+1}, 16, v{b+1}")
        a(f"v_add_f32 v{b+1}, 0x3727c5ac, v{b+1}")
        a(f"v_cvt_pk_bf16_f32 v{b+1}, v{b+1}, v{b+1}")
        a(f"v_lshlrev_b32 v{b+1}, 16, v{b+1}")
        a(f"v_sqrt_f32 v{b+1}, v{b+1}")
        a(f"v_cvt_pk_bf16_f32 v{b+1}, v{b+1}, v{b+1}")
        a(f"v_lshlrev_b32 v{b+3}, 16, v{b+1}")
        a(f"v_rcp_f32 v{RS+4*i}, v{b+3}")
        a(f"v_sub_f32 v{b}, 0, v{b}")
        a(f"v_cvt_pk_bf16_f32 v{b}, v{b}, v{b}")
        a(f"v_and_b32 v{b+1}, 0xffff, v{b+1}")
        a(f"v_cndmask_b32 v{XF+4*i}, 0, v{b}, s[74:75]")
        a(f"v_cndmask_b32 v{XF+1+4*i}, 0, v{b+1}, s[74:75]")
        a(f"v_mov_b32 v{XF+2+4*i}, 0")
        a(f"v_mov_b32 v{XF+3+4*i}, 0")
        a(f"v_mul_f32 v{RS+2+4*i}, {LOG2E}, v{RS+4*i}")
        a(f"v_cvt_pk_bf16_f32 v{b+5}, v{b+4}, v{b+4}")
        a(f"v_lshlrev_b32 v{b+6}, 16, v{b+5}")
        a(f"v_sub_f32 v{b+6}, v{b+4}, v{b+6}")
        a(f"v_cvt_pk_bf16_f32 v{b+5}, v{b+4}, v{b+6}")
        a(f"v_cndmask_b32 v{WF+4*i}, 0, v{b+5}, s[74:75]")
        a(f"v_cndmask_b32 v{WF+1+4*i}, 0, v{B1R+i}, s[74:75]")
        a(f"v_mov_b32 v{WF+2+4*i}, 0")
        a(f"v_mov_b32 v{WF+3+4*i}, 0")
    for fi in range(2):
        for ti in range(2):
            c = ACC + 16 * (2 * fi + ti)
            a(f"v_mfma_f32_32x32x16_bf16 v[{c}:{c+15}], v[{WF+4*fi}:{WF+3+4*fi}], v[{XF+4*ti}:{XF+3+4*ti}], v[{c}:{c+15}]")
    stamp(a, 4)
    end = a.newlabel("g1end")
    a("s_cmp_eq_u32 s7, 13")
    a("s_cselect_b32 s14, s9, 0")
    a("s_cmp_lg_u32 s14, 0")
    a(f"s_cbranch_scc1 {end}")
    a("v_mov_b32 v160, 1.0")
    a("v_mov_b32 v161, 1.0")
    a("v_mov_b32 v162, -2.0")
    a("v_mov_b32 v163, -2.0")
    a("v_bfe_u32 v8, v2, 4, 1")
    a("v_mul_u32_u24 v8, 55296, v8")
    a("v_and_b32 v9, 15, v2")
    a("v_lshl_add_u32 v8, v9, 4, v8")
    a("v_lshl_add_u32 v8, v7, 8, v8")
    a("s_mul_i32 s14, s6, 432")
    a("s_lshl_b32 s73, s7, 2")
    a("s_add_u32 s14, s14, s73")
    for fi, sfb in enumerate((67, 68)):
        for ti, stb in enumerate((15, 64)):
            c = ACC + 16 * (2 * fi + ti)
            rs = RS + 4 * ti
            a(f"s_mul_i32 s73, s{stb}, 108")
            a(f"s_add_u32 s73, s73, s14")
            a(f"s_add_u32 s73, s73, s{sfb}")
            a(f"s_lshl_b32 s73, s73, 10")
            O = 168 + 8 * ((2 * fi + ti) & 1)
            for half in range(2):
                ps = range(4 * half, 4 * half + 4)
                T = lambda p: 32 + 2 * (p & 3) + 8 * half
                X = lambda p: c + 2 * p
                for p in ps: a(f"v_pk_mul_f32 v[{T(p)}:{T(p)+1}], v[{X(p)}:{X(p)+1}], v[{rs+2}:{rs+3}] op_sel_hi:[1,0]")
                for p in ps:
                    a(f"v_exp_f32 v{T(p)}, v{T(p)}")
                    a(f"v_exp_f32 v{T(p)+1}, v{T(p)+1}")
                    a(f"v_pk_mul_f32 v[{X(p)}:{X(p)+1}], v[{X(p)}:{X(p)+1}], v[{rs}:{rs+1}] op_sel_hi:[1,0]")
                for p in ps: a(f"v_pk_add_f32 v[{T(p)}:{T(p)+1}], v[{T(p)}:{T(p)+1}], v[160:161]")
                for p in ps: a(f"v_pk_fma_f32 v[{T(p)}:{T(p)+1}], v[{T(p)}:{T(p)+1}], v[{T(p)}:{T(p)+1}], v[160:161]")
                for p in ps:
                    a(f"v_rcp_f32 v{T(p)}, v{T(p)}")
                    a(f"v_rcp_f32 v{T(p)+1}, v{T(p)+1}")
                for p in ps: a(f"v_pk_fma_f32 v[{T(p)}:{T(p)+1}], v[{T(p)}:{T(p)+1}], v[162:163], v[160:161]")
                for p in ps: a(f"v_pk_mul_f32 v[{X(p)}:{X(p)+1}], v[{X(p)}:{X(p)+1}], v[{T(p)}:{T(p)+1}]")
                for p in ps: a(f"v_cvt_pk_bf16_f32 v{O+p}, v{X(p)}, v{X(p)+1}")
                b = O + 4 * half
                a(f"v_permlane32_swap_b32 v{b}, v{b+2}")
                a(f"v_permlane32_swap_b32 v{b+1}, v{b+3}")
                a(f"buffer_store_dwordx4 v[{b}:{b+3}], v8, s[56:59], s73 offen offset:{512*half}{WT}")
    a.label(end)
    stamp(a, 5)
    if STAMPS:
        a("s_waitcnt vmcnt(0)")
        stamp(a, 6)
        stamp_flush(a, 7, wg_s)
    a("s_endpgm")
```

```python
from common import *
WT2 = os.environ.get('WT2', '')

G2_S = 61440
G2_LDS = G2_S + 4 * 3072

def role_gemm2(a, wg_s, flags=False):
    stamp(a, 0)
    a(f"s_setprio {os.environ.get('GPRIO', '1')}")
    srd(a, 48, P_WS, SZ_H, WS_H)
    srd(a, 52, P_WS, SZ_W2T, WS_W2T)
    srd(a, 56, P_WS, SZ_ST, WS_ST)
    srd(a, 60, P_U, 2621440)
    srd(a, 64, P_OUT, 2621440)
    a(f"s_and_b32 s4, s{wg_s}, 7")
    a(f"s_lshr_b32 s5, s{wg_s}, 3")
    a("s_and_b32 s6, s4, 3")
    a("s_lshl_b32 s6, s6, 3")
    a("s_and_b32 s7, s5, 7")
    a("s_add_u32 s6, s6, s7")
    a("s_lshr_b32 s7, s4, 2")
    a("s_lshl_b32 s7, s7, 2")
    a("s_lshr_b32 s8, s5, 3")
    a("s_add_u32 s7, s7, s8")
    a("v_and_b32 v2, 63, v0")
    a("v_lshrrev_b32 v3, 6, v0")
    a("v_readfirstlane_b32 s8, v3")
    a("v_lshlrev_b32 v4, 4, v2")
    for i in range(1, 5):
        a(f"v_add_u32 v{4+i}, {55296*i}, v4")
    for i in range(4):
        a(f"s_add_u32 s9, s8, {i}")
        a("s_and_b32 s9, s9, 3")
        a("s_mul_i32 s9, s9, 55296")
        a(f"v_add_u32 v{252+i}, s9, v4")
    a("s_mul_i32 s9, s6, 221184")
    a("s_lshl_b32 s10, s8, 10")
    a("s_add_u32 s9, s9, s10")
    a("s_mul_i32 s11, s7, 276480")
    a("s_add_u32 s10, s11, s10")
    ACC = 16
    BUF = 96
    NST = 14
    def loads_list(st):
        b = BUF + 36 * (st % 4)
        out = []
        pre = []
        if st == NST - 1:
            pre = ["s_cmp_lt_u32 s8, 2", "s_cselect_b32 s9, s9, 0x7f000000", "s_cselect_b32 s10, s10, 0x7f000000"]
        for j in range(5):
            out.append([f"buffer_load_dwordx4 v[{b+16+4*j}:{b+16+4*j+3}], v{4+j}, s[52:55], s10 offen"])
            if j < 4:
                out.append([f"buffer_load_dwordx4 v[{b+4*j}:{b+4*j+3}], v{252+j}, s[48:51], s9 offen"])
        out[0] = pre + out[0]
        if st < NST - 1:
            out[-1] += ["s_add_u32 s9, s9, 4096", "s_add_u32 s10, s10, 4096"]
        return out
    def loads(st):
        for g in loads_list(st):
            for x in g: a(x)
    loads(0); loads(1); loads(2)
    a("v_and_b32 v9, 15, v2")
    a("v_lshrrev_b32 v10, 4, v2")
    a("s_lshl_b32 s11, s6, 6")
    a("s_lshl_b32 s12, s8, 4")
    a("s_add_u32 s11, s11, s12")
    a("v_add_u32 v11, s11, v9")
    a("s_mul_i32 s12, s7, 80")
    a("v_lshl_add_u32 v12, v10, 2, s12")
    a("v_mul_u32_u24 v13, 1280, v11")
    a("v_lshl_add_u32 v13, v12, 1, v13")
    a("v_lshrrev_b32 v14, 1, v2")
    a("v_add_u32 v14, s12, v14")
    a("v_lshlrev_b32 v14, 12, v14")
    a("v_and_b32 v15, 1, v2")
    a("v_lshl_add_u32 v14, v15, 4, v14")
    a("s_lshl_b32 s13, s11, 1")
    a("v_add_u32 v14, s13, v14")
    a("v_add_u32 v15, 0x40000, v14")
    a("v_mov_b32 v251, 0x7f000000")
    a("v_cmp_gt_u32 vcc, 32, v2")
    a("v_cndmask_b32 v15, v251, v15, vcc")
    if flags:
        srd(a, 68, P_WS, SZ_FLG, WS_FLG)
        a("s_lshl_b32 s72, s7, 8")
        a("v_mov_b32 v251, 0")
    XR = 240
    SR = BUF + 72
    sfx = " sc1" if flags else ""
    def sloads():
        a(f"buffer_load_dwordx4 v[{SR}:{SR+3}], v14, s[56:59], s73 offen{sfx}")
        a(f"s_add_u32 s74, s73, 0x20000")
        a(f"buffer_load_dwordx4 v[{SR+4}:{SR+7}], v14, s[56:59], s74 offen{sfx}")
        a(f"buffer_load_dwordx4 v[{SR+8}:{SR+11}], v15, s[56:59], s73 offen{sfx}")
    def flagload():
        a("buffer_load_dword v250, v251, s[68:71], s72 offen sc1")
    def flagcheck():
        a("v_readfirstlane_b32 s75, v250")
        a("s_cmp_ge_u32 s75, 20")
        a("s_cselect_b32 s75, 1, 0")
        a("s_cselect_b32 s73, 0, 0x7f000000")
    stamp(a, 1)
    for st in range(NST):
        fill = loads_list(st + 3) if st + 3 < NST else []
        if st == 11:
            fill = [[f"buffer_load_dwordx2 v[{XR+2*j}:{XR+2*j+1}], v13, s[60:63], 0 offen offset:{32*j}"] for j in range(5)]
        if st == 12:
            fill = [["buffer_load_dword v250, v251, s[68:71], s72 offen sc1"]]
        rem = min(NST - 1, st + 2) - st
        a(f"s_waitcnt vmcnt({9*rem + (5 if st >= 12 else 0) + (1 if st >= 13 else 0)})")
        if st == 0: stamp(a, 2)
        b = BUF + 36 * (st % 4)
        n = 0
        for j in range(5):
            for i in range(4):
                c = ACC + 4 * (4 * j + i)
                src = "0" if st == 0 else f"v[{c}:{c+3}]"
                a(f"v_mfma_f32_16x16x32_bf16 v[{c}:{c+3}], v[{b+16+4*j}:{b+16+4*j+3}], v[{b+4*i}:{b+4*i+3}], {src}")
                if n % 2 == 1 and fill:
                    for x in fill.pop(0): a(x)
                n += 1
    stamp(a, 3)
    a("s_waitcnt vmcnt(0)")
    flagcheck()
    sloads()
    for i in range(1, 4):
        a(f"s_add_u32 s13, s8, {i}")
        a("s_and_b32 s13, s13, 3")
        a("s_mul_i32 s13, s13, 15360")
        a("v_add_u32 v9, s13, v4")
        for j in range(5):
            c = ACC + 4 * (4 * j + i)
            a(f"ds_write_b128 v9, v[{c}:{c+3}] offset:{5120*(i-1)+1024*j}")
    a("s_mul_i32 s13, s8, 15360")
    a("v_add_u32 v9, s13, v4")
    a("s_waitcnt lgkmcnt(0)")
    a("s_barrier")
    P = 96
    for sl in range(3):
        for j in range(5):
            a(f"ds_read_b128 v[{P+20*sl+4*j}:{P+20*sl+4*j+3}], v9 offset:{5120*sl+1024*j}")
    O = lambda k: ACC + 16 * (k // 4) + (k % 4)
    a("v_mov_b32 v10, 1.0")
    a("v_mov_b32 v11, 1.0")
    a(f"v_mov_b32 v12, {LOG2E ^ 0x80000000}")
    for sl in range(3):
        a(f"s_waitcnt lgkmcnt({5*(2-sl)})")
        for k in range(0, 20, 2):
            a(f"v_pk_add_f32 v[{O(k)}:{O(k)+1}], v[{O(k)}:{O(k)+1}], v[{P+20*sl+k}:{P+20*sl+k+1}]")
    stamp(a, 4)
    ks = list(range(0, 20, 2))
    T = lambda k: 96 + k
    for k in ks: a(f"v_cvt_pk_bf16_f32 v{T(k)}, v{O(k)}, v{O(k)+1}")
    for k in ks:
        a(f"v_lshlrev_b32 v{O(k)}, 16, v{T(k)}")
        a(f"v_and_b32 v{O(k)+1}, 0xffff0000, v{T(k)}")
    for k in ks: a(f"v_pk_mul_f32 v[{T(k)}:{T(k)+1}], v[{O(k)}:{O(k)+1}], v[12:13] op_sel_hi:[1,0]")
    for k in ks:
        a(f"v_exp_f32 v{T(k)}, v{T(k)}")
        a(f"v_exp_f32 v{T(k)+1}, v{T(k)+1}")
    for k in ks: a(f"v_pk_add_f32 v[{T(k)}:{T(k)+1}], v[{T(k)}:{T(k)+1}], v[10:11]")
    for k in ks:
        a(f"v_rcp_f32 v{T(k)}, v{T(k)}")
        a(f"v_rcp_f32 v{T(k)+1}, v{T(k)+1}")
    for k in ks: a(f"v_pk_mul_f32 v[{T(k)}:{T(k)+1}], v[{T(k)}:{T(k)+1}], v[{O(k)}:{O(k)+1}]")
    for k in ks: a(f"v_cvt_pk_bf16_f32 v{T(k)}, v{T(k)}, v{T(k)+1}")
    for k in ks:
        a(f"v_lshlrev_b32 v{O(k)}, 16, v{T(k)}")
        a(f"v_and_b32 v{O(k)+1}, 0xffff0000, v{T(k)}")
    XU = lambda k: 116 + k
    for k in ks:
        a(f"v_lshlrev_b32 v{XU(k)}, 16, v{XR+k//2}")
        a(f"v_and_b32 v{XU(k)+1}, 0xffff0000, v{XR+k//2}")
    a("s_mul_i32 s13, s8, 3072")
    a("v_add_u32 v9, s13, v4")
    a("v_lshlrev_b32 v10, 3, v2")
    a("v_add_u32 v10, s13, v10")
    okl = a.newlabel("g2ok"); spin = a.newlabel("g2spin"); got = a.newlabel("g2got")
    a("s_cmp_lg_u32 s75, 0")
    a(f"s_cbranch_scc1 {okl}")
    a.label(spin)
    flagload()
    a("s_waitcnt vmcnt(0)")
    flagcheck()
    a("s_cmp_lg_u32 s75, 0")
    a(f"s_cbranch_scc1 {got}")
    a("s_sleep 8")
    a(f"s_branch {spin}")
    a.label(got)
    sloads()
    a.label(okl)
    a("s_waitcnt vmcnt(0)")
    for q in range(3):
        a(f"ds_write_b128 v9, v[{SR+4*q}:{SR+4*q+3}] offset:{G2_S+1024*q}")
    for j in range(5):
        a(f"ds_read_b64_tr_b16 v[{SR+2*j}:{SR+2*j+1}], v10 offset:{G2_S+512*j}")
    a("s_waitcnt lgkmcnt(0)")
    for k in ks:
        a(f"v_lshlrev_b32 v{T(k)}, 16, v{SR+k//2}")
        a(f"v_and_b32 v{T(k)+1}, 0xffff0000, v{SR+k//2}")
    for k in ks: a(f"v_pk_mul_f32 v[{T(k)}:{T(k)+1}], v[{T(k)}:{T(k)+1}], v[{O(k)}:{O(k)+1}]")
    for k in ks: a(f"v_cvt_pk_bf16_f32 v{O(k)}, v{T(k)}, v{T(k)+1}")
    for k in ks:
        a(f"v_lshlrev_b32 v{T(k)}, 16, v{O(k)}")
        a(f"v_and_b32 v{T(k)+1}, 0xffff0000, v{O(k)}")
    for k in ks: a(f"v_pk_add_f32 v[{T(k)}:{T(k)+1}], v[{T(k)}:{T(k)+1}], v[{XU(k)}:{XU(k)+1}]")
    for k in ks: a(f"v_cvt_pk_bf16_f32 v{XR+k//2}, v{T(k)}, v{T(k)+1}")
    for j in range(5):
        a(f"buffer_store_dwordx2 v[{XR+2*j}:{XR+2*j+1}], v13, s[64:67], 0 offen offset:{32*j}{WT2}")
    stamp(a, 5)
    if STAMPS:
        a("s_waitcnt vmcnt(0)")
        stamp(a, 6)
        stamp_flush(a, 7, wg_s, base=0x10000)
    a("s_endpgm")
```

```python
from common import *
from role_kgen import *

KC_KL = 4096
KC_X = KC_KL + 4160
KC_LDS = KC_X + 4544
KC_ST = 0

class Lgkm:
    def __init__(self, a): self.a = a; self.n = 0; self.done = 0
    def issue(self, text):
        self.a(text); self.n += 1; return self.n
    def need(self, tok):
        if tok <= self.done: return
        out = self.n - tok
        self.a(f"s_waitcnt lgkmcnt({min(out, 15)})")
        self.done = tok if out <= 15 else self.n - 15
        if out > 15: self.done = max(self.done, tok)

def role_kconv(a, wg_s, fuse=True):
    stamp(a, 0)
    a("s_setprio 3")
    XT = 200
    def early(a):
        srd(a, 76, P_WS, SZ_XNP, WS_XNP)
        a("v_lshrrev_b32 v180, 4, v2")
        a("v_and_b32 v181, 15, v2")
        a("v_mul_u32_u24 v182, 40960, v180")
        a("v_lshl_add_u32 v182, v181, 4, v182")
        a("s_mul_i32 s10, s4, 655360")
        a(f"s_lshl_b32 s11, s{wg_s}, 8")
        a("s_add_u32 s10, s10, s11")
        for q in range(4):
            a(f"buffer_load_dwordx4 v[{XT+4*q}:{XT+4*q+3}], v182, s[76:79], s10 offen")
            if q < 3: a("s_add_u32 s10, s10, 163840")
        a("v_lshrrev_b32 v182, 2, v181")
        a(f"v_mul_u32_u24 v182, {KC_LDS}, v182")
        a("v_lshl_add_u32 v182, v180, 6, v182")
        a("v_and_b32 v181, 3, v181")
        a("v_lshl_add_u32 v182, v181, 4, v182")
        a("s_lshl_b32 s10, s4, 10")
        a("v_add_u32 v182, s10, v182")
        a("v_lshlrev_b32 v183, 4, v2")
        a("v_add_u32 v183, s6, v183")
        for r in range(184, 188): a(f"v_mov_b32 v{r}, 0")
        a("v_cmp_gt_u32 vcc, 28, v2")
        a("s_and_saveexec_b64 s[12:13], vcc")
        a(f"ds_write_b128 v183, v[184:187] offset:{KC_X}")
        a(f"ds_write_b128 v183, v[184:187] offset:{KC_KL}")
        a("s_mov_b64 exec, s[12:13]")
        return 4
    def mid(a):
        a("s_waitcnt vmcnt(0)")
        for q in range(4):
            a(f"ds_write_b128 v182, v[{XT+4*q}:{XT+4*q+3}] offset:{KC_X+448+256*q}")
    if True:
        srd(a, 52, P_WS, SZ_K, WS_K)
        a("v_and_b32 v2, 63, v0")
        a("v_lshrrev_b32 v3, 6, v0")
        a("v_readfirstlane_b32 s4, v3")
        a(f"s_lshl_b32 s5, s{wg_s}, 2")
        a("s_add_u32 s5, s5, s4")
        a(f"s_mul_i32 s6, s4, {KC_LDS}")
        a("s_lshl_b32 s7, s5, 12")
        a("s_lshl_b32 s8, s5, 1")
        a("v_lshlrev_b32 v4, 4, v2")
        a("v_mov_b32 v5, 0")
        for q in range(4):
            a(f"buffer_load_dwordx4 v[{16+4*q}:{19+4*q}], v4, s[52:55], s7 offen offset:{1024*q}")
        early(a)
        a("s_waitcnt vmcnt(4)")
        for q in range(4):
            a(f"ds_write_b128 v183, v[{16+4*q}:{19+4*q}] offset:{KC_KL+64+1024*q}")
        mid(a)
    stamp(a, 1)
    srd(a, 56, P_WS, SZ_ST, WS_ST)
    a("v_and_b32 v7, 31, v2")
    a("v_lshrrev_b32 v8, 2, v7")
    a("v_lshrrev_b32 v10, 5, v2")
    a("v_add_u32 v8, v8, v10")
    a("v_and_b32 v7, 3, v2")
    a("v_lshlrev_b32 v8, 6, v8")
    a("v_lshl_add_u32 v8, v7, 4, v8")
    a("v_add_u32 v10, s6, v8")
    a("v_bfe_u32 v13, v2, 4, 1")
    a("v_lshlrev_b32 v13, 4, v13")
    a("v_and_b32 v14, 3, v2")
    a("v_lshl_add_u32 v13, v14, 2, v13")
    a("v_bfe_u32 v14, v2, 2, 2")
    a("v_lshlrev_b32 v14, 2, v14")
    a("v_sub_u32 v13, v13, v14")
    a("v_lshrrev_b32 v14, 5, v2")
    a("v_lshlrev_b32 v14, 5, v14")
    a("v_sub_u32 v13, v13, v14")
    a("v_add_u32 v13, 48, v13")
    a("v_lshl_add_u32 v13, v13, 1, s6")
    a("v_lshl_add_u32 v14, v2, 1, s6")
    a("v_lshlrev_b32 v4, 4, v2")
    a("v_add_u32 v12, s6, v4")
    ACC = 128
    KB = 16
    XB = 32
    NXB = 18
    C = [104, 105, 106]
    PK = 108
    for c in C: a(f"v_mov_b32 v{c}, 0")
    a("s_waitcnt lgkmcnt(0)")
    a("s_barrier")
    a(f"s_setprio {os.environ.get('CPRIO', '0')}")
    L = Lgkm(a)
    ktok = {}; xtok = {}
    kc = [0]; xc = [0]
    kslot = {}; xslot = {}
    def kread(key, kap):
        r = KB + 4 * (kc[0] % 4); kc[0] += 1
        kslot[key] = r
        L.issue(f"ds_read_b64_tr_b16 v[{r}:{r+1}], v13 offset:{KC_KL+128*kap+32}")
        ktok[key] = L.issue(f"ds_read_b64_tr_b16 v[{r+2}:{r+3}], v13 offset:{KC_KL+128*kap}")
    xfree = [XB + 4 * i for i in range(NXB)]
    xlive = {}
    def xread(key, e):
        r = xfree.pop(0)
        xslot[key] = r; xlive[key] = r
        xtok[key] = L.issue(f"ds_read_b128 v[{r}:{r+3}], v10 offset:{KC_X+384+128*e}")
    carry = list(C)
    def epi(u):
        out = []
        z = lambda q, r: ACC + 16 * u + 4 * q + r
        cur = [z(q, 3) for q in range(4)]
        newcarry = []
        for lvl, zr in enumerate((2, 1, 0)):
            new = []
            pv = [carry[lvl]] + cur[:3]
            seq = []
            for q in range(4):
                seq.append(f"v_add_f32_dpp v{pv[q]}, v{pv[q]}, v{z(q, zr)} wave_ror:1 row_mask:0xf bank_mask:0xf")
                seq.append(f"v_add_f32_dpp v{pv[q]}, v{cur[q]}, v{z(q, zr)} wave_shr:1 row_mask:0xf bank_mask:0xf")
            out.extend(seq)
            newcarry.append(cur[3])
            cur = pv
        for q2 in range(2):
            t = PK + 2 * (u & 1) + q2
            out.append(f"v_cvt_pk_bf16_f32 v{t}, v{cur[2*q2]}, v{cur[2*q2+1]}")
            out.append(("lds", f"ds_write_b16 v14, v{t} offset:{KC_ST + 128*(4*u+2*q2)}"))
            out.append(("lds", f"ds_write_b16_d16_hi v14, v{t} offset:{KC_ST + 128*(4*u+2*q2+1)}"))
        carry[:] = newcarry
        return out
    pend = []
    def emit_epi(n):
        while n > 0 and pend:
            x = pend.pop(0)
            if isinstance(x, tuple): L.issue(x[1])
            else: a(x)
            n -= 1
    steps = [(0, k) for k in range(16)] + [(1, k) for k in range(32)]
    def needs(p, kap):
        return [(u, 4 * u - kap) for u in range(4 * p, 4 * p + 4) if 4 * u - kap >= -3]
    xorder = []
    seen = set()
    for (p, kap) in steps:
        for u, e in needs(p, kap):
            if (p, e) not in seen:
                seen.add((p, e)); xorder.append((p, e, steps.index((p, kap))))
    lastuse = {}
    for si_, (p, kap) in enumerate(steps):
        for u, e in needs(p, kap): lastuse[(p, e)] = si_
    def xrelease(si):
        for k in list(xlive):
            if lastuse[k] < si: xfree.append(xlive.pop(k))
    xi = 0
    def xprefetch(upto_step):
        nonlocal xi
        while xi < len(xorder) and xorder[xi][2] <= upto_step:
            p, e, _ = xorder[xi]; xread((p, e), e); xi += 1
    kread(steps[0], 0); xprefetch(0); kread(steps[1], 1); xprefetch(1)
    started = set()
    delay = []
    nm = 0
    for si, (p, kap) in enumerate(steps):
        xrelease(si)
        if si + 2 < len(steps): kread(steps[si + 2], steps[si + 2][1])
        xprefetch(si + 1 if (si < 4 or 14 <= si < 20) else si + 2)
        nd = needs(p, kap)
        L.need(max([ktok[(p, kap)]] + [xtok[(p, e)] for u, e in nd]))
        for u, e in nd:
            c = ACC + 16 * u
            xr = xslot[(p, e)]; kr = kslot[(p, kap)]
            src = f"v[{c}:{c+15}]" if u in started else "0"
            started.add(u)
            a(f"v_mfma_f32_32x32x16_bf16 v[{c}:{c+15}], v[{xr}:{xr+3}], v[{kr}:{kr+3}], {src}")
            nm += 1
            if e == -3: delay.append((nm + 2, u))
            while delay and delay[0][0] <= nm:
                pend.extend(epi(delay.pop(0)[1]))
            emit_epi(3)
    stamp(a, 2)
    a("s_setprio 3")
    while delay: pend.extend(epi(delay.pop(0)[1]))
    emit_epi(10000)
    stamp(a, 3)
    a("s_lshl_b32 s7, s5, 12")
    for q in range(4):
        a(f"ds_read_b128 v[{KB+4*q}:{KB+4*q+3}], v12 offset:{KC_ST+1024*q}")
    for q in range(4):
        a(f"s_waitcnt lgkmcnt({3-q})")
        a(f"buffer_store_dwordx4 v[{KB+4*q}:{KB+4*q+3}], v4, s[56:59], s7 offen offset:{1024*q} sc1")
    stamp(a, 4)
    a(f"s_mul_i32 s7, s{wg_s}, 3277")
    a("s_lshr_b32 s7, s7, 16")
    a("s_lshl_b32 s7, s7, 8")
    signal(a, 7, inws=True)
    stamp(a, 5)
    if STAMPS:
        a("s_waitcnt vmcnt(0)")
        stamp(a, 6)
        stamp_flush(a, 7, wg_s, base=0x20000)
    a("s_endpgm")
```

```python
from common import *
import struct

KG_ROW = 272
KG_TAB = 16 * KG_ROW
KG_LDS = 6144

def role_kgen(a, wg_s):
    for i, p in enumerate((P_ARE, P_AIM, P_BRE, P_BIM, P_CRE, P_CIM)):
        srd(a, 48 + 4 * i, p, 163840)
    srd(a, 72, P_LDT, 1280)
    srd(a, 80, P_DSK, 1280)
    a("v_and_b32 v2, 63, v0")
    a("v_lshrrev_b32 v3, 6, v0")
    a("v_readfirstlane_b32 s4, v3")
    a(f"s_lshl_b32 s5, s{wg_s}, 2")
    a("s_add_u32 s5, s5, s4")
    a("s_lshl_b32 s7, s5, 8")
    a("s_lshl_b32 s8, s5, 1")
    a("v_lshlrev_b32 v4, 1, v2")
    a("v_mov_b32 v5, 0")
    a("buffer_load_ushort v6, v5, s[72:75], s8 offen")
    for h in range(2):
        for i in range(6):
            a(f"buffer_load_ushort v{8+6*h+i}, v4, s[{48+4*i}:{51+4*i}], s7 offen offset:{128*h}")
    a("v_cmp_eq_u32 vcc, 0, v2")
    a("v_mov_b32 v120, 0x7f000000")
    a("v_cndmask_b32 v120, v120, v5, vcc")
    a("buffer_load_ushort v121, v120, s[80:83], s8 offen")
    srd(a, 76, P_WS, SZ_K, WS_K)
    a(f"s_mul_i32 s6, s4, {KG_LDS}")
    a("v_lshlrev_b32 v20, 2, v2")
    a("v_add_u32 v20, s6, v20")
    a("v_and_b32 v21, 15, v2")
    a(f"v_mul_u32_u24 v21, {KG_ROW}, v21")
    a("v_lshrrev_b32 v22, 4, v2")
    a("v_lshlrev_b32 v23, 4, v22")
    a("v_add3_u32 v21, v21, v23, s6")
    a(f"s_mov_b32 s10, {LOG2E}")
    a(f"s_mov_b32 s11, {INV2PI}")
    a("v_and_b32 v23, 15, v2")
    a(f"s_add_u32 s14, s6, {KG_TAB}")
    a("v_lshrrev_b32 v122, 1, v22")
    a("v_lshlrev_b32 v122, 8, v122")
    a("v_and_b32 v123, 1, v22")
    a("v_lshl_add_u32 v122, v123, 3, v122")
    a("v_lshl_add_u32 v122, v23, 4, v122")
    a("v_add_u32 v122, s14, v122")
    a("v_cmp_gt_u32 vcc, 2, v22")
    a("v_lshlrev_b32 v123, 3, v23")
    a("v_lshlrev_b32 v124, 2, v23")
    a("v_cndmask_b32 v123, v124, v123, vcc")
    a("v_lshl_add_u32 v123, v22, 7, v123")
    a("v_add_u32 v123, s14, v123")
    a("v_mov_b32 v124, 64")
    a("v_cndmask_b32 v124, v124, 4, vcc")
    a("v_add_u32 v124, v124, v123")
    a("v_lshlrev_b32 v125, 7, v22")
    a("v_lshl_add_u32 v125, v23, 1, v125")
    a("v_add_u32 v125, s14, v125")
    a("s_waitcnt vmcnt(13)")
    a("v_lshlrev_b32 v6, 16, v6")
    a("v_mul_f32 v7, s10, v6")
    a("v_fma_f32 v5, v6, s10, -v7")
    a(f"v_mov_b32 v36, {LOG2E_LO}")
    a("v_fmac_f32 v5, v6, v36")
    a("v_exp_f32 v7, v7")
    a(f"v_mul_f32 v5, {LN2}, v5")
    a("v_fmac_f32 v7, v7, v5")
    a("v_cvt_pk_bf16_f32 v7, v7, v7")
    a("v_lshlrev_b32 v7, 16, v7")

    A2, B2 = 36, 37
    C = (38, 39)
    T0, T1, T2, T3 = 40, 41, 42, 43
    W8 = (44, 45)
    E = {e: (46 + 2 * (e - 1), 47 + 2 * (e - 1)) for e in range(1, 8)}
    H = {i: (60 + 2 * (i - 1), 61 + 2 * (i - 1)) for i in range(1, 17)}
    FA, FB = (92, 93), (94, 95)
    G = [(96, 97), (98, 99)]
    S = [100, 101, 102, 103]
    FH = 104
    GH = 128
    tc = [0]
    def cmul(d, x, y):
        t = (T0, T2)[tc[0] & 1]; tc[0] += 1
        a(f"v_pk_mul_f32 v[{t}:{t+1}], v[{x[0]}:{x[1]}], v[{y[0]}:{y[1]}] op_sel:[1,1] op_sel_hi:[1,0] neg_lo:[1,0]")
        a(f"v_pk_fma_f32 v[{d[0]}:{d[1]}], v[{x[0]}:{x[1]}], v[{y[0]}:{y[1]}], v[{t}:{t+1}] op_sel:[0,0,0] op_sel_hi:[0,1,1]")
    def cexp(d, val, conj=False):
        lit = "0x%08x" % struct.unpack("<I", struct.pack("<f", float(val)))[0]
        if val == 1:
            a(f"v_exp_f32 v{T0}, v{A2}")
            a(f"v_fract_f32 v{T1}, v{B2}")
        else:
            a(f"v_mul_f32 v{T0}, {lit}, v{A2}")
            a(f"v_mul_f32 v{T1}, {lit}, v{B2}")
            a(f"v_exp_f32 v{T0}, v{T0}")
            a(f"v_fract_f32 v{T1}, v{T1}")
        a(f"v_cos_f32 v{T2}, v{T1}")
        a(f"v_sin_f32 v{T3}, v{T1}")
        a(f"v_mul_f32 v{d[0]}, v{T0}, v{T2}")
        if conj: a(f"v_mul_f32 v{d[1]}, -v{T0}, v{T3}")
        else: a(f"v_mul_f32 v{d[1]}, v{T0}, v{T3}")
    pc = [0]
    def put(row, x):
        r = S[pc[0] & 3]; pc[0] += 1
        a(f"v_cvt_pk_bf16_f32 v{r}, v{x[0]}, v{x[1]}")
        a(f"ds_write_b32 v20, v{r} offset:{row*KG_ROW}")
    def readfr(hi):
        for ks in range(4):
            a(f"ds_read_b128 v[{hi+4*ks}:{hi+4*ks+3}], v21 offset:{64*ks}")
    def mm(t, gh, first, cnt):
        acc = f"v[{24+4*t}:{27+4*t}]"
        a(f"s_waitcnt lgkmcnt({cnt})")
        for ks in range(4):
            src = "0" if (first and ks == 0) else acc
            a(f"v_mfma_f32_16x16x32_bf16 {acc}, v[{gh+4*ks}:{gh+4*ks+3}], v[{FH+4*ks}:{FH+4*ks+3}], {src}")
    gc = [0]
    def gprod(row, x, y):
        g = G[gc[0] & 1]; gc[0] += 1
        cmul(g, x, y); put(row, g)

    for h in range(2):
        p = 8 + 6 * h
        a(f"s_waitcnt vmcnt({7 - 6*h})")
        for i in range(6): a(f"v_lshlrev_b32 v{p+i}, 16, v{p+i}")
        a(f"v_mul_f32 v{A2}, v7, v{p}")
        a(f"v_mul_f32 v{B2}, v7, v{p+1}")
        a(f"v_mul_f32 v{A2}, s10, v{A2}")
        a(f"v_mul_f32 v{B2}, s11, v{B2}")
        a(f"v_mul_f32 v{p+2}, v7, v{p+2}")
        a(f"v_mul_f32 v{p+3}, v7, v{p+3}")
        cmul(C, (p + 4, p + 5), (p + 2, p + 3))
        cexp(W8, 8, conj=True)
        a(f"v_xor_b32 v{C[1]}, 0x80000000, v{C[1]}")
        if h == 1:
            mm(2, GH, True, 0)
        cur = C
        for j in range(16):
            put(j, cur)
            if j < 15:
                nxt = FA if cur != FA else FB
                cmul(nxt, cur, W8)
                cur = nxt
        readfr(FH)
        cexp(E[1], 1)
        cexp(H[1], 128)
        cexp(H[8], 1024)
        a(f"v_mov_b32 v{S[0]}, 0x3f80")
        a(f"ds_write_b32 v20, v{S[0]}")
        pc[0] = 1
        put(1, E[1])
        for e in range(2, 8):
            cmul(E[e], E[e - 1], E[1]); put(e, E[e])
        put(8, H[1])
        for e in range(1, 8): gprod(8 + e, H[1], E[e])
        readfr(GH)
        for i in range(2, 8): cmul(H[i], H[i - 1], H[1])
        for i in range(2):
            put(4 * i, H[2 + i])
            for e in range(1, 4): gprod(4 * i + e, H[2 + i], E[2 * e])
        mm(0, GH, h == 0, 8)
        for i in range(4):
            put(8 + 2 * i, H[4 + i])
            gprod(9 + 2 * i, H[4 + i], E[4])
        readfr(GH + 16)
        put(0, H[8])
        for i in range(9, 17):
            cmul(H[i], H[i - 8], H[8]); put(i - 8, H[i])
        mm(1, GH + 16, h == 0, 9)
        readfr(GH)
    mm(2, GH, False, 0)
    a("s_waitcnt vmcnt(0)")
    a("v_lshlrev_b32 v121, 16, v121")
    a("v_add_f32 v24, v24, v121")
    a("v_cvt_pk_bf16_f32 v40, v24, v25")
    a("v_cvt_pk_bf16_f32 v41, v26, v27")
    a("ds_write_b64 v122, v[40:41]")
    a("v_cvt_pk_bf16_f32 v42, v28, v29")
    a("v_cvt_pk_bf16_f32 v43, v30, v31")
    a("ds_write_b32 v123, v42 offset:512")
    a("ds_write_b32 v124, v43 offset:512")
    a("v_cvt_pk_bf16_f32 v44, v32, v33")
    a("v_cvt_pk_bf16_f32 v45, v34, v35")
    a("ds_write_b16 v125, v44 offset:1024")
    a("ds_write_b16_d16_hi v125, v44 offset:1056")
    a("ds_write_b16 v125, v45 offset:1088")
    a("ds_write_b16_d16_hi v125, v45 offset:1120")
    a("v_cmp_gt_u32 vcc, 32, v2")
    a("v_lshlrev_b32 v46, 4, v2")
    a("v_lshlrev_b32 v47, 3, v2")
    a("v_add_u32 v47, 256, v47")
    a("v_cndmask_b32 v47, v47, v46, vcc")
    a("v_add_u32 v47, s14, v47")
    a("ds_read2_b64 v[48:51], v47 offset0:0 offset1:1")
    a("v_lshlrev_b32 v47, 2, v2")
    a("v_add_u32 v47, s14, v47")
    a("ds_read2_b32 v[52:53], v47 offset0:192 offset1:193")
    a("v_add_u32 v47, s14, v4")
    a("ds_read_u16 v54, v47 offset:1024")
    a("ds_read_u16 v55, v47 offset:1026")
    a("ds_read_u16 v56, v47 offset:1152")
    a("ds_read_u16 v57, v47 offset:1154")
    a("v_mov_b32 v58, 0x01000100")
    a("v_mov_b32 v59, 0x03020100")
    a("v_cndmask_b32 v58, v58, v59, vcc")
    a("v_mov_b32 v59, 0x05040302")
    a("v_mov_b32 v60, 0x07060504")
    a("v_cndmask_b32 v59, v59, v60, vcc")
    a("v_mov_b32 v61, 0x01000100")
    a("v_cndmask_b32 v60, v61, v60, vcc")
    a("s_mov_b32 s9, 0x05040302")
    a("s_mov_b32 s12, 0x01000100")
    a("s_mov_b32 s13, 0x03020302")
    a("v_and_b32 v61, 1, v2")
    a("v_mul_u32_u24 v61, 0x0404, v61")
    a("v_add_u32 v61, 0x05040100, v61")
    a("s_lshl_b32 s7, s5, 12")
    O = 64
    a("s_waitcnt lgkmcnt(5)")
    a(f"v_perm_b32 v{O}, v49, v48, v58")
    a(f"v_perm_b32 v{O+1}, v49, v48, v59")
    a(f"v_perm_b32 v{O+2}, v50, v49, v60")
    a(f"v_perm_b32 v{O+3}, v50, v49, s9")
    a(f"v_cndmask_b32 v{O+3}, v{O+3}, v51, vcc")
    a(f"buffer_store_dwordx4 v[{O}:{O+3}], v46, s[76:79], s7 offen{WT}")
    a("s_waitcnt lgkmcnt(4)")
    a(f"v_perm_b32 v{O+4}, v52, v52, s12")
    a(f"v_mov_b32 v{O+5}, v52")
    a(f"v_perm_b32 v{O+6}, v52, v52, s13")
    a(f"v_perm_b32 v{O+7}, v53, v53, s12")
    a(f"buffer_store_dwordx4 v[{O+4}:{O+7}], v46, s[76:79], s7 offen offset:1024{WT}")
    a("s_waitcnt lgkmcnt(0)")
    for q in range(2):
        a0, a1 = 54 + 2 * q, 55 + 2 * q
        o = O + 8 + 4 * q
        a(f"v_perm_b32 v{o}, v{a0}, v{a0}, s12")
        a(f"v_perm_b32 v{o+1}, v{a0}, v{a0}, s12")
        a(f"v_perm_b32 v{o+2}, v{a1}, v{a0}, v61")
        a(f"v_perm_b32 v{o+3}, v{a1}, v{a1}, s12")
        a(f"buffer_store_dwordx4 v[{o}:{o+3}], v46, s[76:79], s7 offen offset:{2048+1024*q}{WT}")
    a("s_endpgm")
```

```python
import sys
from common import *
from role_aux import *
from role_kgen import *
from role_gemm1 import *
from role_conv import *
from role_gemm2 import *
from role_kconv import *

def build(kernels, path):
    out = []
    for n, roles, lds, vg in kernels:
        g = sum(c for c, f in roles)
        out.append(f"; @launch kernel={n} grid=({g},1,1) block=(256,1,1) lds={lds}")
    out.append('.amdgcn_target "amdgcn-amd-amdhsa--gfx950"\n.text\n.p2align 8\ncode_start:')
    uid = 0
    for n, roles, lds, vg in kernels:
        a = Asm(); a.uid = uid
        kidx = [k[0] for k in kernels].index(n)
        if STAMPS:
            class A2(Asm):
                def __call__(self, text):
                    if text.strip() == "s_endpgm" and getattr(self, "inrole", False):
                        self.inrole = False
                        rt_end(self, kidx)
                        self.inrole = True
                    Asm.__call__(self, text)
            a = A2(); a.uid = uid
        a.raw(f".globl {n}\n.p2align 8\n.type {n},@function\n{n}:")
        prologue(a)
        start = 0
        labs = []
        for i, (c, f) in enumerate(roles):
            labs.append(f"{n}_r{i}")
            a(f"s_cmp_lt_u32 s2, {start + c}")
            a(f"s_cbranch_scc1 {labs[-1]}")
            start += c
        a("s_endpgm")
        start = 0
        for i, (c, f) in enumerate(roles):
            a.label(labs[i])
            a.hist = []
            a(f"s_sub_u32 s3, s2, {start}")
            a("s_waitcnt lgkmcnt(0)")
            rt_start(a)
            a.inrole = True
            f(a, 3)
            a.inrole = False
            start += c
        out.append(a.text())
        uid = a.uid
    out.append('code_end:\n.section .rodata,"a"')
    for n, roles, lds, vg in kernels:
        out.append(kdesc(n, vg))
    open(path, "w").write("\n".join(out))

if __name__ == "__main__":
    import os
    drop = os.environ.get("DROP", "")
    def empty(a, w): a("s_endpgm")
    r1 = [(224, empty if "g1" in drop else role_gemm1),
          (32, empty if "pf" in drop else role_pf1),
          (64, empty if "lnt" in drop else (lambda a, w: role_lnt(a, w, remap=True))),
          (160, empty if "kgen" in drop else role_kgen)]
    r2 = [(160, lambda a, w: role_kconv(a, w, fuse=False)),
          (256, empty if 'g2' in drop else (lambda a, w: role_gemm2(a, w, flags=True)))]
    build([
        ("l1_kernel", r1, G1_LDS, 256),
        ("l2_kernel", r2, max(G2_LDS, 4 * KC_LDS), 256),
    ], "t4.s")
```
